```python
import torch

def _softmax(x, axis=-1):
    return torch.softmax(x, dim=axis)

def _gelu(x):
    return torch.nn.functional.gelu(x, approximate='tanh')

def _silu(x):
    return torch.nn.functional.silu(x)

def _sigmoid(x):
    return torch.sigmoid(x)

def _layernorm(x, axis=-1, eps=1e-05):
    m = x.mean(dim=axis, keepdim=True)
    v = x.var(dim=axis, keepdim=True, unbiased=False)
    return (x - m) / torch.sqrt(v + eps)

def _scatter_add(tgt, idx, src, axis=0):
    return tgt.clone().index_add_(axis, idx, src)

def _segment_sum(src, seg, n):
    out = torch.zeros((n,) + src.shape[1:], dtype=src.dtype)
    return out.index_add_(0, seg, src)

def _pad(x, pw):
    flat = tuple((v for pair in reversed(pw) for v in pair))
    return torch.nn.functional.pad(x, flat)
kernel_name = 'standalone__swin_window_attn__vision'

def setup_inputs():

    _w = lambda a: (lambda t: t.to(torch.bfloat16) if t.is_floating_point() else t)(torch.as_tensor(a))
    H = W = 384 // 7 * 7
    C, win = (96, 7)
    return {'x': _w((lambda *s: torch.randn(*s, dtype=torch.bfloat16) * 0.4)(1, H, W, C)), 'wqkv': _w((lambda *s: torch.randn(*s, dtype=torch.bfloat16) * 0.4)(C, 3 * C)), 'wo': _w((lambda *s: torch.randn(*s, dtype=torch.bfloat16) * 0.05)(C, C))}

def reference(x, wqkv, wo):
    B, H, W, C = x.shape
    win = 7
    nh, nw = (H // win, W // win)
    xw = (lambda x, *d: x.permute(*d))(x.reshape(B, nh, win, nw, win, C), 0, 1, 3, 2, 4, 5)
    xw = xw.reshape(B * nh * nw, win * win, C)
    qkv = xw @ wqkv
    q, k, v = (qkv[..., :C].clone(), qkv[..., C:2 * C].clone(), qkv[..., 2 * C:].clone())
    scale = C ** (-0.5)
    p = _softmax(torch.einsum('bqc,bkc->bqk', q, k) * scale, axis=-1)
    o = torch.einsum('bqk,bkc->bqc', p, v) @ wo
    o = (lambda x, *d: x.permute(*d))(o.reshape(B, nh, nw, win, win, C), 0, 1, 3, 2, 4, 5)
    return o.reshape(B, H, W, C)
```

```python
import re

REG_RE = re.compile(r'\b([vsa])(?:\[(\d+):(\d+)\]|(\d+)\b)')

TRANS = ('v_exp_f32', 'v_log_f32', 'v_rcp_f32', 'v_rsq_f32', 'v_sqrt_f32', 'v_sin_f32', 'v_cos_f32')


def regs_of(tok):
    out = []
    tok = tok.strip()
    if tok in ('vcc', 'exec', 'm0', 'scc'):
        return [(tok, 0)]
    if tok in ('vcc_lo', 'vcc_hi'):
        return [('vcc', 0)]
    if tok in ('exec_lo', 'exec_hi'):
        return [('exec', 0)]
    for m in REG_RE.finditer(tok):
        k = m.group(1)
        if m.group(4) is not None:
            out.append((k, int(m.group(4))))
        else:
            out.extend((k, i) for i in range(int(m.group(2)), int(m.group(3)) + 1))
    return out


def split_ops(s):
    ops, depth, cur = [], 0, ''
    for ch in s:
        if ch == '[':
            depth += 1
        if ch == ']':
            depth -= 1
        if ch == ',' and depth == 0:
            ops.append(cur.strip())
            cur = ''
        else:
            cur += ch
    if cur.strip():
        ops.append(cur.strip())
    return ops


class Ins:
    def __init__(self, text, tag=None):
        self.text = text.strip()
        self.tag = tag
        t = self.text.split(';')[0].strip()
        parts = t.split(None, 1)
        self.op = parts[0]
        rest = parts[1] if len(parts) > 1 else ''
        self.ops = split_ops(rest)
        op = self.op
        self.reads, self.writes = [], []
        self.kind = 'other'
        self.mfma_c = []
        self.mfma_ab = []
        o = self.ops
        if op.endswith(':'):
            self.kind = 'label'
        elif op.startswith('v_mfma'):
            self.kind = 'mfma'
            self.passes = 8 if '32x32x16' in op else 4
            self.writes = regs_of(o[0])
            self.mfma_ab = regs_of(o[1]) + regs_of(o[2])
            self.mfma_c = regs_of(o[3].split()[0])
            self.reads = self.mfma_ab + self.mfma_c + [('exec', 0)]
        elif op.startswith('v_'):
            base = op.replace('_e32', '').replace('_e64', '')
            self.kind = 'trans' if base in TRANS else 'valu'
            lastfix = [x.split()[0] if i == len(o) - 1 else x for i, x in enumerate(o)]
            if base.startswith('v_permlane') and 'swap' in base:
                self.writes = regs_of(lastfix[0]) + regs_of(lastfix[1])
                self.reads = list(self.writes)
                self.kind = 'permlane'
            elif base.startswith('v_cmp'):
                self.writes = regs_of(lastfix[0])
                for x in lastfix[1:]:
                    self.reads += regs_of(x)
            elif base in ('v_readfirstlane_b32', 'v_readlane_b32'):
                self.writes = regs_of(lastfix[0])
                for x in lastfix[1:]:
                    self.reads += regs_of(x)
                self.kind = 'readlane'
            else:
                self.writes = regs_of(lastfix[0])
                for x in lastfix[1:]:
                    self.reads += regs_of(x)
                if base in ('v_fmac_f32', 'v_dot2c_f32_bf16', 'v_pk_fmac_f16'):
                    self.reads += self.writes
                if base == 'v_cndmask_b32' and len(o) == 3:
                    self.reads.append(('vcc', 0))
                if 'dpp' in op or 'row_' in t or 'quad_perm' in t:
                    self.dpp = True
            self.reads.append(('exec', 0))
        elif op.startswith('ds_read'):
            self.kind = 'ds_read'
            self.writes = regs_of(o[0])
            self.reads = regs_of(o[1].split()[0]) + [('exec', 0)]
        elif op.startswith('ds_write'):
            self.kind = 'ds_write'
            for x in o:
                self.reads += regs_of(x.split()[0])
            self.reads.append(('exec', 0))
        elif op.startswith('ds_bpermute') or op.startswith('ds_swizzle'):
            self.kind = 'ds_read'
            self.writes = regs_of(o[0])
            for x in o[1:]:
                self.reads += regs_of(x.split()[0])
        elif op.startswith('buffer_load') or op.startswith('global_load'):
            islds = re.search(r'\blds\b', t) is not None or 'load_lds' in op
            if islds:
                self.kind = 'dma'
                for x in o:
                    self.reads += regs_of(x.split()[0])
                self.reads.append(('m0', 0))
            else:
                self.kind = 'vload'
                self.writes = regs_of(o[0])
                for x in o[1:]:
                    self.reads += regs_of(x.split()[0])
            self.reads.append(('exec', 0))
        elif op.startswith('buffer_store') or op.startswith('global_store') or op.startswith('buffer_atomic'):
            self.kind = 'vstore'
            for x in o:
                self.reads += regs_of(x.split()[0])
            self.store_data = regs_of(o[0]) if op.startswith('buffer') else regs_of(o[1])
            self.wide = ('x4' in op) or ('x3' in op)
            self.reads.append(('exec', 0))
        elif op.startswith('s_load') or op.startswith('s_memtime') or op.startswith('s_memrealtime'):
            self.kind = 'smem'
            self.writes = regs_of(o[0])
            for x in o[1:]:
                self.reads += regs_of(x.split()[0])
        elif op == 's_waitcnt':
            self.kind = 'waitcnt'
        elif op == 's_barrier':
            self.kind = 'barrier'
        elif op == 's_nop':
            self.kind = 'nop'
            self.n = int(o[0], 0) + 1
        elif op.startswith('s_cbranch') or op == 's_branch':
            self.kind = 'branch'
            if 'scc' in op:
                self.reads = [('scc', 0)]
        elif op in ('s_endpgm', 's_setprio', 's_sleep'):
            self.kind = 'other'
        elif op.startswith('s_cmp'):
            self.kind = 'salu'
            for x in o:
                self.reads += regs_of(x)
            self.writes = [('scc', 0)]
        elif op.startswith('s_'):
            self.kind = 'salu'
            self.writes = regs_of(o[0])
            for x in o[1:]:
                self.reads += regs_of(x)
            if op.startswith('s_cselect') or op.startswith('s_addc'):
                self.reads.append(('scc', 0))
            if not (op.startswith('s_mov') or op.startswith('s_cselect') or op.startswith('s_mul')
                    or op.startswith('s_getreg')):
                self.writes.append(('scc', 0))
        else:
            raise ValueError('unknown instruction ' + text)
        self.rset = set(self.reads)
        self.wset = set(self.writes)

    def is_valu(self):
        return self.kind in ('valu', 'trans', 'permlane', 'readlane')

    def states(self):
        if self.kind == 'nop':
            return self.n
        if self.kind == 'label':
            return 0
        return 1

    def __repr__(self):
        return self.text


def parse_wait(ins):
    vm = lg = None
    m = re.search(r'vmcnt\((\d+)\)', ins.text)
    if m:
        vm = int(m.group(1))
    m = re.search(r'lgkmcnt\((\d+)\)', ins.text)
    if m:
        lg = int(m.group(1))
    return vm, lg


def insert_waits(prog):
    out = []
    lg = []
    vm = []
    for ins in prog:
        if ins.kind == 'waitcnt':
            v, l = parse_wait(ins)
            if v is not None:
                vm = vm[len(vm) - v:] if v < len(vm) else vm
                if v == 0:
                    vm = []
            if l is not None:
                if any(x.kind == 'smem' for x in lg) and l != 0:
                    pass
                else:
                    lg = lg[len(lg) - l:] if l < len(lg) else lg
                    if l == 0:
                        lg = []
            out.append(ins)
            continue
        touch = ins.rset | ins.wset
        need_l = need_v = None
        for i, p in enumerate(lg):
            if p.wset & touch:
                n = len(lg) - 1 - i
                if p.kind == 'smem' or any(x.kind == 'smem' for x in lg):
                    n = 0
                need_l = n if need_l is None else min(need_l, n)
        for i, p in enumerate(vm):
            if p.wset & touch:
                n = len(vm) - 1 - i
                need_v = n if need_v is None else min(need_v, n)
        if need_l is not None or need_v is not None:
            s = 's_waitcnt'
            if need_v is not None:
                need_v = min(need_v, 63)
                s += ' vmcnt(%d)' % need_v
                vm = vm[len(vm) - need_v:] if need_v else []
            if need_l is not None:
                need_l = min(need_l, 15)
                s += ' lgkmcnt(%d)' % need_l
                lg = lg[len(lg) - need_l:] if need_l else []
            out.append(Ins(s))
        if ins.kind in ('ds_read', 'ds_write', 'smem'):
            lg.append(ins)
        if ins.kind in ('vload', 'vstore', 'dma'):
            vm.append(ins)
        out.append(ins)
    return out


def vreg(rs):
    return {r for r in rs if r[0] in ('v', 'a')}


def sreg(rs):
    return {r for r in rs if r[0] in ('s', 'vcc')}


def required_distance(p, c):
    need = 0
    pv = p.is_valu()
    if pv:
        pw = vreg(p.wset)
        ps = sreg(p.wset)
        if c.kind == 'mfma' and pw & vreg(c.rset):
            need = max(need, 2)
        if c.kind == 'permlane' and pw & vreg(c.rset):
            need = max(need, 2)
        if getattr(c, 'dpp', False) and pw & vreg(c.rset):
            need = max(need, 2)
        if c.kind == 'readlane' and pw & vreg(c.rset):
            need = max(need, 1)
        if p.kind == 'trans' and c.is_valu() and c.kind != 'trans' and pw & (vreg(c.rset) | vreg(c.wset)):
            need = max(need, 1)
        if ps:
            if c.is_valu() and ps & sreg(c.rset):
                need = max(need, 4 if c.kind == 'readlane' else 2)
            if c.kind in ('vload', 'vstore', 'dma') and ps & sreg(c.rset):
                need = max(need, 5)
            if c.kind in ('salu', 'smem', 'branch') and ps & sreg(c.rset):
                need = max(need, 2)
        if ('exec', 0) in p.wset:
            need = max(need, 5)
    if p.kind == 'mfma':
        d = vreg(p.wset)
        big = p.passes == 8
        if c.kind == 'mfma':
            cc = set(c.mfma_c)
            if d & set(c.mfma_ab):
                need = max(need, 12 if big else 8)
            if d & cc:
                if cc == d and c.passes == p.passes:
                    pass
                else:
                    need = max(need, 10 if big else 6)
            elif d & vreg(c.wset):
                need = max(need, 10 if big else 6)
        elif c.kind not in ('nop', 'label', 'waitcnt'):
            if d & (vreg(c.rset) | vreg(c.wset)):
                need = max(need, 12 if big else 8)
        if c.is_valu() and set(p.mfma_c) & vreg(c.wset):
            need = max(need, 7 if big else 3)
    if p.kind == 'vstore' and p.wide:
        if set(p.store_data) & vreg(c.wset):
            need = max(need, 2 if c.is_valu() else 1)
    if p.kind == 'salu' and ('m0', 0) in p.wset and c.kind == 'dma':
        need = max(need, 1)
    return need


def insert_nops(prog, window=24):
    out = []
    for ins in prog:
        dist = 0
        short = 0
        for p in reversed(out):
            if dist >= window:
                break
            r = required_distance(p, ins)
            if r > dist:
                short = max(short, r - dist)
            dist += p.states()
        while short > 0:
            k = min(short, 16)
            out.append(Ins('s_nop %d' % (k - 1)))
            short -= k
        out.append(ins)
    return out


class Prog:
    def __init__(self):
        self.l = []

    def __call__(self, text, tag=None):
        for line in text.strip().split('\n'):
            line = line.strip()
            if not line or line.startswith(';'):
                continue
            self.l.append(Ins(line, tag))
        return self

    def extend(self, other):
        self.l.extend(other.l if isinstance(other, Prog) else other)


def finalize(prog_list):
    p = insert_waits(prog_list)
    p = insert_nops(p)
    return p


def render(p):
    lines = []
    for i in p:
        if i.kind == 'label':
            lines.append(i.text)
        else:
            lines.append('    ' + i.text)
    return '\n'.join(lines) + '\n'


def merge(main, fill, ratio):
    out = []
    fi = 0
    credit = 0.0
    for m in main:
        out.append(m)
        if m.kind == 'mfma':
            credit += ratio
            while fi < len(fill) and credit > 0:
                f = fill[fi]
                out.append(f)
                credit -= 2.0 if f.kind == 'trans' else 1.0
                fi += 1
    out.extend(fill[fi:])
    return out


def stats(p):
    from collections import Counter
    c = Counter(i.kind for i in p)
    nopstates = sum(i.n for i in p if i.kind == 'nop')
    return dict(c), nopstates
```

```python
import sys, struct, math, os
sys.path.insert(0, os.path.dirname(os.path.abspath(__file__)))
from asmlib import *

NAME = 'standalone__swin_window_attn__vision'
XBYTES = 27433728
NWG = 243
FOLD = 0
XBUF0 = 36864
XSTR = 9408
RAW = XBUF0 + 4 * XSTR
RAWO = RAW + 55296
LDS = XBUF0 + 12 * XSTR

opts = dict(a.split('=') for a in sys.argv[2:] if '=' in a)
LDFLAG = opts.get('ld', '')
STFLAG = opts.get('st', '')
RATIO = float(opts.get('ratio', '5'))

cscale = (96.0 ** -0.5) * math.log2(math.e)
CS_HEX = '0x%08x' % struct.unpack('<I', struct.pack('<f', cscale))[0]

for idx in range(2916):
    assert (idx * 1214) >> 16 == idx // 54
for k in range(216 + 24):
    assert (k * 57) >> 9 == k // 9

ROWJ = 72576 - 1344


def vr(b, n=4):
    return 'v[%d:%d]' % (b, b + n - 1)


vXA0, vXA1, vXB0, vXB1, vT0, vT1, vT3, vW, vLin = 4, 5, 6, 7, 8, 9, 10, 11, 12
XF = 14
WB = 62
NWB = 3
TB = 74
ACCA, ACCB = 98, 114
S0 = 130
TMP = 162
XRAW = 128
GOFF = 118

sW = 3
sLOM = 60


def xf(j, s):
    return XF + 24 * j + 4 * s


def goff_code(p, G, t0):
    l16, a, z = t0, t0 + 1, t0 + 2
    sw = [t0 + 3, t0 + 4, t0 + 5]
    p('v_lshlrev_b32 v%d, 4, v0' % l16)
    p('v_lshrrev_b32 v%d, 4, v0' % a)
    p('v_mul_u32_u24 v%d, 43, v%d' % (a, a))
    p('s_mov_b32 s40, 0x30')
    for m in range(3):
        if m:
            p('v_add_u32 v%d, %d, v%d' % (z, 4 * m * 43, a))
            p('v_lshrrev_b32 v%d, 3, v%d' % (z, z))
        else:
            p('v_lshrrev_b32 v%d, 3, v%d' % (z, a))
        p('v_bitop3_b32 v%d, v%d, s40, v%d bitop3:0x6a' % (sw[m], z, l16))
    for n in range(10):
        r0 = (64 * n) // 84
        thr = 84 * (r0 + 1) - 64 * n
        if thr >= 64:
            p('v_mov_b32 v%d, v%d' % (G + n, sw[n % 3]))
        else:
            mask = (~((1 << thr) - 1)) & 0xFFFFFFFFFFFFFFFF
            add = ROWJ if n < 9 else 0x40000000
            p('s_mov_b32 s42, 0x%x' % (mask & 0xffffffff))
            p('s_mov_b32 s43, 0x%x' % (mask >> 32))
            p('v_add_u32 v%d, 0x%x, v%d' % (z, add, sw[n % 3]))
            p('v_cndmask_b32 v%d, v%d, v%d, s[42:43]' % (G + n, sw[n % 3], z))


def prologue():
    p = Prog()
    p('s_cmp_ge_u32 s2, %d' % NWG)
    p('s_cbranch_scc1 L_end')
    p('s_load_dwordx4 s[4:7], s[0:1], 0')
    p('s_load_dwordx4 s[8:11], s[0:1], 16')
    p('v_lshrrev_b32 v1, 6, v0')
    p('v_readfirstlane_b32 s3, v1')
    p('v_and_b32 v0, 63, v0')
    p('s_cmp_lt_u32 s3, 9')
    p('s_cselect_b32 s25, 0, 9')
    p('s_cselect_b32 s26, 0x30, 0')
    p('s_sub_u32 s25, s3, s25')
    p('s_mul_i32 s27, s25, 24')
    p('s_mul_i32 s28, s25, 6144')
    p('s_add_u32 s29, s28, 4096')
    p('v_lshlrev_b32 v2, 4, v0')
    p('v_lshrrev_b32 v1, 4, v0')
    p('v_add_u32 v1, s27, v1')
    p('v_mul_u32_u24 v1, 57, v1')
    for i in range(6):
        t = 4 + i
        if i:
            p('v_add_u32 v%d, %d, v1' % (t, 228 * i))
            p('v_lshrrev_b32 v%d, 5, v%d' % (t, t))
        else:
            p('v_lshrrev_b32 v%d, 5, v1' % t)
        p('v_bitop3_b32 v%d, v%d, s26, v2 bitop3:0x6a' % (t, t))
    p('s_mul_i32 s27, s3, 6144')
    p('s_add_u32 s27, s27, %d' % RAW)
    p('s_mov_b32 m0, s27')
    p('s_mul_i32 s24, s2, 12')
    p('s_add_u32 s24, s24, s3')
    p('s_mul_i32 s25, s24, 1214')
    p('s_lshr_b32 s25, s25, 16')
    p('s_mul_i32 s44, s25, 54')
    p('s_sub_u32 s24, s24, s44')
    p('s_mul_i32 s24, s24, 1344')
    p('s_mul_i32 s25, s25, 508032')
    p('s_add_u32 s24, s24, s25')
    for n in range(10):
        r0 = (64 * n) // 84
        p('s_add_u32 s%d, s24, %d' % (30 + n, 1024 * n + ROWJ * r0))
    p('s_mov_b32 s14, %d' % XBYTES)
    p('s_mov_b32 s15, 0x20000')
    p('s_mov_b32 s18, %d' % XBYTES)
    p('s_mov_b32 s19, 0x20000')
    p('s_mov_b32 s23, 0x20000')
    p('s_movk_i32 s22, 18432')
    p('s_cmp_lt_u32 s3, 9')
    p('s_cselect_b32 s22, 55296, s22')
    p('s_waitcnt lgkmcnt(0)')
    p('s_cselect_b32 s20, s6, s8')
    p('s_cselect_b32 s21, s7, s9')
    for i in range(4):
        p('buffer_load_dwordx4 v%d, s[20:23], s28 offen offset:%d lds' % (4 + i, 1024 * i))
    p('s_add_u32 s27, s27, 4096')
    p('s_mov_b32 m0, s27')
    for i in range(4, 6):
        p('buffer_load_dwordx4 v%d, s[20:23], s29 offen offset:%d lds' % (4 + i, 1024 * (i - 4)))
    p('s_mov_b32 s12, s4')
    p('s_mov_b32 s13, s5')
    p('s_mov_b32 s16, s10')
    p('s_mov_b32 s17, s11')
    goff_code(p, GOFF, 20)
    for n in range(10):
        p('buffer_load_dwordx4 %s, v%d, s[12:15], s%d offen %s' % (vr(XRAW + 4 * n), GOFF + n, 30 + n, LDFLAG))
    p('v_and_b32 v1, 31, v0')
    p('v_lshrrev_b32 v2, 5, v0')
    p('v_and_b32 v3, 0x13, v1')
    p('v_and_b32 v4, 4, v1')
    p('v_lshl_or_b32 v3, v4, 1, v3')
    p('v_and_b32 v4, 8, v1')
    p('v_lshrrev_b32 v4, 1, v4')
    p('v_or_b32 v3, v3, v4')
    p('s_movk_i32 s40, 576')

    def rowaddr(dst, row):
        p('v_bfe_u32 v4, v%d, 2, 2' % row)
        p('v_xor_b32 v4, v4, v2')
        p('v_lshlrev_b32 v4, 4, v4')
        p('v_mad_u32_u24 v%d, v%d, s40, v4' % (dst, row))
    rowaddr(5, 3)
    rowaddr(6, 1)
    p('s_mul_i32 s44, s3, 43')
    p('s_lshr_b32 s44, s44, 7')
    p('s_mul_i32 s45, s44, 3')
    p('s_sub_u32 s45, s3, s45')
    p('s_mul_i32 s46, s44, 18432')
    p('s_add_u32 s46, s46, %d' % RAW)
    p('s_mul_i32 s47, s45, 18432')
    p('s_add_u32 s47, s47, %d' % (RAW + 192))
    p('v_add_u32 v7, s46, v5')
    p('v_xor_b32 v8, 32, v7')
    p('v_add_u32 v9, s47, v5')
    p('v_xor_b32 v10, 32, v9')
    p('s_add_u32 s48, s46, %d' % (384 - 18432))
    p('v_add_u32 v11, s48, v6')
    p('v_xor_b32 v12, 32, v11')
    p('v_bfe_u32 v4, v0, 2, 2')
    p('v_lshl_add_u32 v4, v2, 3, v4')
    p('v_mul_u32_u24 v13, 0xc0, v4')
    p('v_and_b32 v4, 16, v0')
    p('v_lshl_add_u32 v13, v4, 1, v13')
    p('v_and_b32 v4, 1, v0')
    p('v_lshl_add_u32 v13, v4, 4, v13')
    p('v_and_b32 v4, 2, v0')
    p('v_lshl_add_u32 v13, v4, 2, v13')
    p('s_lshl_b32 s49, s45, 6')
    p('s_add_u32 s49, s49, %d' % RAWO)
    p('v_add_u32 v13, s49, v13')
    p('s_mul_i32 s50, s45, 6144')
    p('s_lshl_b32 s51, s44, 11')
    p('s_add_u32 s50, s50, s51')
    p('v_lshlrev_b32 v3, 4, v0')
    p('v_add_u32 v3, s50, v3')
    p('s_mov_b32 s52, %s' % CS_HEX)
    p('s_waitcnt vmcnt(10)')
    p('s_barrier')
    FA, FB, AC = 14, 38, 62
    p('s_cmp_ge_u32 s3, 9')
    p('s_cbranch_scc1 L_skipM')
    for s in range(6):
        p('ds_read_b128 %s, v%d offset:%d' % (vr(FA + 4 * s), 7 + (s & 1), 64 * (s >> 1)))
        p('ds_read_b128 %s, v%d offset:%d' % (vr(FB + 4 * s), 9 + (s & 1), 64 * (s >> 1)))
    for s in range(6):
        p('v_mfma_f32_32x32x16_bf16 %s, %s, %s, %s' % (vr(AC, 16), vr(FA + 4 * s), vr(FB + 4 * s),
                                                       '0' if s == 0 else vr(AC, 16)))
    for i in range(16):
        p('v_mul_f32 v%d, s52, v%d' % (AC + i, AC + i))
    for i in range(8):
        p('v_cvt_pk_bf16_f32 v%d, v%d, v%d' % (AC + i, AC + 2 * i, AC + 2 * i + 1))
    p('ds_write_b128 v3, %s' % vr(AC))
    p('ds_write_b128 v3, %s offset:1024' % vr(AC + 4))
    p('s_waitcnt lgkmcnt(0)')
    p('s_nop 7')
    p('L_skipM:')
    p('s_cmp_lt_u32 s3, 3')
    p('s_cbranch_scc1 L_skipW')
    AC = 78
    for s in range(6):
        p('ds_read_b128 %s, v%d offset:%d' % (vr(FA + 4 * s), 11 + (s & 1), 64 * (s >> 1)))
        p('ds_read_b64_tr_b16 %s, v13 offset:%d' % (vr(FB + 4 * s, 2), 3072 * s))
        p('ds_read_b64_tr_b16 %s, v13 offset:%d' % (vr(FB + 4 * s + 2, 2), 3072 * s + 768))
    for s in range(6):
        p('v_mfma_f32_32x32x16_bf16 %s, %s, %s, %s' % (vr(AC, 16), vr(FA + 4 * s), vr(FB + 4 * s),
                                                       '0' if s == 0 else vr(AC, 16)))
    for i in range(8):
        p('v_cvt_pk_bf16_f32 v%d, v%d, v%d' % (AC + i, AC + 2 * i, AC + 2 * i + 1))
    p('ds_write_b128 v3, %s offset:%d' % (vr(AC), 18432 - 2048))
    p('ds_write_b128 v3, %s offset:%d' % (vr(AC + 4), 18432 - 1024))
    p('s_waitcnt lgkmcnt(0)')
    p('s_nop 7')
    p('L_skipW:')
    p('s_mul_i32 s53, s3, %d' % XSTR)
    p('s_add_u32 s53, s53, %d' % XBUF0)
    p('s_movk_i32 s40, 192')
    p('v_bfe_u32 v3, v1, 2, 2')
    p('v_xor_b32 v3, v3, v2')
    p('v_lshl_add_u32 v3, v3, 4, s53')
    p('v_mad_u32_u24 v%d, v1, s40, v3' % vXA0)
    p('v_xor_b32 v%d, 32, v%d' % (vXA1, vXA0))
    p('v_add_u32 v13, 32, v1')
    p('v_min_u32 v13, 48, v13')
    p('v_bfe_u32 v3, v13, 2, 2')
    p('v_xor_b32 v3, v3, v2')
    p('v_lshl_add_u32 v3, v3, 4, s53')
    p('v_mad_u32_u24 v%d, v13, s40, v3' % vXB0)
    p('v_xor_b32 v%d, 32, v%d' % (vXB1, vXB0))
    p('v_and_b32 v3, 16, v0')
    p('v_lshlrev_b32 v3, 1, v3')
    p('v_and_b32 v13, 3, v0')
    p('v_lshl_add_u32 v3, v13, 3, v3')
    p('v_add_u32 v%d, s53, v3' % vT3)
    p('v_add_u32 v%d, %d, v%d' % (vT3, 192 * 48, vT3))
    p('v_lshlrev_b32 v13, 4, v2')
    p('v_xor_b32 v3, v3, v13')
    p('v_add_u32 v3, s53, v3')
    p('v_bfe_u32 v13, v0, 2, 2')
    p('v_lshl_add_u32 v13, v2, 2, v13')
    p('v_mad_u32_u24 v%d, v13, s40, v3' % vT0)
    p('v_xor_b32 v%d, 32, v%d' % (vT1, vT0))
    p('v_lshlrev_b32 v%d, 4, v0' % vW)
    p('v_add_u32 v%d, s53, v%d' % (vLin, vW))
    p('s_mov_b32 s%d, -1' % sLOM)
    p('s_mov_b32 s%d, 0' % (sLOM + 1))
    p('s_barrier')
    for n in range(9):
        p('ds_write_b128 v%d, %s offset:%d' % (vLin, vr(XRAW + 4 * n), 1024 * n))
    p('s_mov_b64 exec, 0xfff')
    p('ds_write_b128 v%d, %s offset:%d' % (vLin, vr(XRAW + 36), 1024 * 9))
    p('s_mov_b64 exec, -1')
    return p.l


class WStream:
    def __init__(self):
        self.k = 0

    def buf(self, k):
        return WB + 4 * (k % NWB)


def proj(fragbase, bops, accs, cvt_dst, ws, post=None, nextfrags=()):
    p = Prog()
    seq = [(a, s) for a in range(3) for s in range(6)]
    offs = [fragbase + (a * 6 + s) * 1024 for a, s in seq] + list(nextfrags)
    pend = []
    for i, (a, s) in enumerate(seq):
        acc = accs[a]
        p('v_mfma_f32_32x32x16_bf16 %s, %s, %s, %s' % (vr(acc, 16), vr(ws.buf(ws.k)), vr(bops[s]),
                                                       '0' if s == 0 else vr(acc, 16)))
        nxt = i + NWB
        if nxt < len(offs):
            p('ds_read_b128 %s, v%d offset:%d' % (vr(ws.buf(ws.k)), vW, offs[nxt]))
        ws.k += 1
        if s >= 2 and pend:
            for _ in range(2):
                if pend:
                    p.l.append(pend.pop(0))
            if s == 5:
                p.l.extend(pend)
                pend = []
        if s == 5:
            q = Prog()
            for k in range(8):
                q('v_cvt_pk_bf16_f32 v%d, v%d, v%d' % (cvt_dst[a] + k, acc + 2 * k, acc + 2 * k + 1))
            if post:
                q.extend(post(a))
            pend = q.l
    return p.l, pend


def prefetch_w(ws, offs):
    p = Prog()
    for i, o in enumerate(offs):
        p('ds_read_b128 %s, v%d offset:%d' % (vr(ws.buf(ws.k + i)), vW, o))
    return p.l


def s_gemm(S):
    p = Prog()
    for kt in range(2):
        for s in range(6):
            acc = S + 16 * kt
            p('v_mfma_f32_32x32x16_bf16 %s, %s, %s, %s' % (vr(acc, 16), vr(xf(kt, s)), vr(TB + 4 * s),
                                                           '0' if s == 0 else vr(acc, 16)))
    return p.l


def softmax(B):
    p = Prog()
    m0, m1, m2, t = TMP, TMP + 1, TMP + 2, TMP + 3
    p('v_max3_f32 v%d, v%d, v%d, v%d' % (m0, B, B + 1, B + 2))
    p('v_max3_f32 v%d, v%d, v%d, v%d' % (m1, B + 3, B + 4, B + 5))
    p('v_max3_f32 v%d, v%d, v%d, v%d' % (m2, B + 6, B + 7, B + 8))
    k = 9
    ms = [m0, m1, m2]
    i = 0
    while k < 25:
        p('v_max3_f32 v%d, v%d, v%d, v%d' % (ms[i % 3], ms[i % 3], B + k, B + k + 1))
        k += 2
        i += 1
    p('v_max3_f32 v%d, v%d, v%d, v%d' % (m0, m0, m1, m2))
    p('v_mov_b32 v%d, v%d' % (t, m0))
    p('v_permlane32_swap_b32 v%d, v%d' % (m0, t))
    p('v_max_f32 v%d, v%d, v%d' % (m0, m0, t))
    for k in range(25):
        p('v_sub_f32 v%d, v%d, v%d' % (B + k, B + k, m0))
        if k >= 1:
            p('v_exp_f32 v%d, v%d' % (B + k - 1, B + k - 1))
        if k >= 5:
            kk = k - 3
            acc = [m1, m2][kk & 1]
            if kk < 4:
                p('v_add_f32 v%d, v%d, v%d' % (acc, B + kk - 2, B + kk))
            else:
                p('v_add_f32 v%d, v%d, v%d' % (acc, acc, B + kk))
    p('v_exp_f32 v%d, v%d' % (B + 24, B + 24))
    p('v_add_f32 v%d, v%d, v%d' % (m1, m1, B + 22))
    p('v_add_f32 v%d, v%d, v%d' % (m2, m2, B + 23))
    p('v_cndmask_b32 v%d, 0, v%d, s[%d:%d]' % (B + 24, B + 24, sLOM, sLOM + 1))
    p('v_add_f32 v%d, v%d, v%d' % (m1, m1, m2))
    p('v_add_f32 v%d, v%d, v%d' % (m1, m1, B + 24))
    p('v_mov_b32 v%d, v%d' % (t, m1))
    p('v_permlane32_swap_b32 v%d, v%d' % (m1, t))
    p('v_add_f32 v%d, v%d, v%d' % (m1, m1, t))
    p('v_rcp_f32 v%d, v%d' % (m1, m1))
    for k in range(12):
        p('v_mul_f32 v%d, v%d, v%d' % (B + 2 * k, B + 2 * k, m1))
        p('v_mul_f32 v%d, v%d, v%d' % (B + 2 * k + 1, B + 2 * k + 1, m1))
        if k >= 1:
            p('v_cvt_pk_bf16_f32 v%d, v%d, v%d' % (B + k - 1, B + 2 * k - 2, B + 2 * k - 1))
    p('v_mul_f32 v%d, v%d, v%d' % (B + 24, B + 24, m1))
    p('v_cvt_pk_bf16_f32 v%d, v%d, v%d' % (B + 11, B + 22, B + 23))
    p('v_cvt_pk_bf16_f32 v%d, v%d, 0' % (B + 12, B + 24))
    for k in (13, 14, 15):
        p('v_mov_b32 v%d, 0' % (B + k))
    return p.l


def xt(a, s):
    return XF + 16 * a + 4 * s


def xt_reads():
    p = Prog()
    for a in range(3):
        for s in range(3):
            p('ds_read_b64_tr_b16 %s, v%d offset:%d' % (vr(xt(a, s), 2), vT0, 3072 * s + 64 * a))
            p('ds_read_b64_tr_b16 %s, v%d offset:%d' % (vr(xt(a, s) + 2, 2), vT1, 3072 * s + 64 * a + 1536))
        p('ds_read_b64_tr_b16 %s, v%d offset:%d' % (vr(xt(a, 3), 2), vT3, 64 * a))
    return p.l


def y_gemm(P, accs):
    p = Prog()
    pend = []
    for a in range(3):
        for s in range(4):
            p('v_mfma_f32_32x32x16_bf16 %s, %s, %s, %s' % (vr(accs[a], 16), vr(xt(a, s)), vr(P + 4 * s),
                                                           '0' if s == 0 else vr(accs[a], 16)))
            if s >= 2 and pend:
                for _ in range(4):
                    p.l.append(pend.pop(0))
        q = Prog()
        for k in range(8):
            q('v_cvt_pk_bf16_f32 v%d, v%d, v%d' % (TB + 8 * a + k, accs[a] + 2 * k, accs[a] + 2 * k + 1))
        pend = q.l
    return p.l, pend


def outwrite(j, accs):
    def post(a):
        q = Prog()
        a0, a1 = (vXA0, vXA1) if j == 0 else (vXB0, vXB1)
        q('ds_write_b128 v%d, %s offset:%d' % (a0, vr(accs[a]), 64 * a))
        q('ds_write_b128 v%d, %s offset:%d' % (a1, vr(accs[a] + 4), 64 * a))
        return q.l
    return post


def main_phase():
    out = []
    ws = WStream()
    MT, WV = 0, 18432
    first = [MT + 1024 * i for i in range(NWB)]
    wfirst = [WV + 1024 * i for i in range(NWB)]
    p = Prog()
    for j in range(2):
        a0, a1 = (vXA0, vXA1) if j == 0 else (vXB0, vXB1)
        for s in range(6):
            p('ds_read_b128 %s, v%d offset:%d' % (vr(xf(j, s)), a0 if (s & 1) == 0 else a1, 64 * (s >> 1)))
        if j == 0:
            p.extend(prefetch_w(ws, first))
    out += p.l
    tdst = [TB, TB + 8, TB + 16]
    l, pend = proj(MT, [xf(0, s) for s in range(6)], [ACCA, ACCB, ACCA], tdst, ws, nextfrags=first)
    out += l + pend
    out += s_gemm(S0)
    l, pend = proj(MT, [xf(1, s) for s in range(6)], [ACCA, ACCB, ACCA], tdst, ws, nextfrags=wfirst)
    mf = l + pend + s_gemm(ACCA)
    out += merge(mf, softmax(S0), RATIO)
    out += xt_reads()
    l, pend = y_gemm(S0, [S0 + 16, TB + 8, S0 + 16])
    mf = l + pend
    oacc = [S0, S0 + 16, S0]
    l, pend = proj(WV, [TB + 4 * s for s in range(6)], oacc, oacc, ws, post=outwrite(0, oacc), nextfrags=wfirst)
    mf += l + pend
    out += merge(mf, softmax(ACCA), RATIO)
    l, pend = y_gemm(ACCA, [ACCB, TB + 8, ACCB])
    out += l + pend
    oacc = [S0, S0 + 16, S0]
    l, pend = proj(WV, [TB + 4 * s for s in range(6)], oacc, oacc, ws, post=outwrite(1, oacc))
    out += l + pend
    p = Prog()
    G = 98
    goff_code(p, G, 110)
    for n in range(10):
        p('ds_read_b128 %s, v%d offset:%d' % (vr(XF + 4 * n), vLin, 1024 * n))
    for n in range(10):
        p('buffer_store_dwordx4 %s, v%d, s[16:19], s%d offen %s' % (vr(XF + 4 * n), G + n, 30 + n, STFLAG))
    out += p.l
    return out


def build():
    body = finalize(prologue() + main_phase())
    hdr = open(os.path.join(os.path.dirname(os.path.abspath(__file__)), 'header.txt')).read()
    s = hdr
    s += '; @launch grid=(%d,1,1) block=(768,1,1) lds=%d\n' % (NWG, LDS)
    s += '.amdgcn_target "amdgcn-amd-amdhsa--gfx950"\n.text\n.globl %s_kernel\n.p2align 8\n' % NAME
    s += '.type %s_kernel,@function\n%s_kernel:\n' % (NAME, NAME)
    s += render(body)
    s += 'L_end:\n    s_endpgm\n'
    s += '''.section .rodata,"a"
.p2align 6
.amdhsa_kernel %s_kernel
  .amdhsa_next_free_vgpr 168
  .amdhsa_next_free_sgpr 72
  .amdhsa_accum_offset 168
  .amdhsa_group_segment_fixed_size 0
  .amdhsa_kernarg_size 48
  .amdhsa_user_sgpr_count 2
  .amdhsa_user_sgpr_kernarg_segment_ptr 1
  .amdhsa_system_sgpr_workgroup_id_x 1
.end_amdhsa_kernel
''' % NAME
    print(stats(body), file=sys.stderr)
    return s


if __name__ == '__main__':
    open(sys.argv[1], 'w').write(build())
```

```python
import sys, struct, math, os
sys.path.insert(0, os.path.dirname(os.path.abspath(__file__)))
from asmlib import *

NAME = 'standalone__swin_window_attn__vision'
XBYTES = 27433728
NWG = 243
FOLD = 0
XBUF0 = 36864
XSTR = 9408
RAW = XBUF0 + 4 * XSTR
RAWO = RAW + 55296
LDS = XBUF0 + 12 * XSTR

opts = dict(a.split('=') for a in sys.argv[2:] if '=' in a)
LDFLAG = opts.get('ld', '')
STFLAG = opts.get('st', '')
RATIO = float(opts.get('ratio', '5'))
STAMP = int(opts.get('stamp', '0'))
nstamp = [0]


def stamp(real=False):
    if not STAMP:
        return []
    k = nstamp[0]
    nstamp[0] += 1
    p = Prog()
    p('%s s[%d:%d]' % ('s_memrealtime' if (real or STAMP == 2) else 's_memtime', 64 + 2 * k, 65 + 2 * k))
    p('s_waitcnt lgkmcnt(0)')
    return p.l


def stamp_dump():
    if not STAMP:
        return []
    p = Prog()
    if STAMP == 2:
        p('s_waitcnt vmcnt(0)')
        p.extend(stamp(True))
        p('s_load_dwordx2 s[4:5], s[0:1], 32')
        p('s_mov_b32 s6, 256')
        p('s_mov_b32 s7, 0x20000')
        p('s_waitcnt lgkmcnt(0)')
        p('s_mov_b64 exec, 1')
        p('v_mov_b32 v1, 0')
        p('s_not_b32 s8, s64')
        p('v_mov_b32 v2, s8')
        p('buffer_atomic_umax v2, v1, s[4:7], 0 offen')
        for k in range(nstamp[0]):
            p('v_mov_b32 v%d, s%d' % (3 + k, 64 + 2 * k))
            p('buffer_atomic_umax v%d, v1, s[4:7], 0 offen offset:%d' % (3 + k, 4 + 4 * k))
        return p.l
    p('s_waitcnt vmcnt(0)')
    p.extend(stamp())
    p.extend(stamp(True))
    p('s_load_dwordx2 s[4:5], s[0:1], 40')
    p('s_mul_i32 s6, s2, 12')
    p('s_add_u32 s6, s6, s3')
    p('s_lshl_b32 s8, s6, 7')
    p('s_mov_b32 s6, 0x1000000')
    p('s_mov_b32 s7, 0x20000')
    p('s_getreg_b32 s9, hwreg(HW_REG_HW_ID)')
    p('s_getreg_b32 s10, hwreg(HW_REG_XCC_ID)')
    p('s_waitcnt lgkmcnt(0)')
    p('v_mov_b32 v1, 0')
    for k in range(nstamp[0]):
        p('v_mov_b32 v2, s%d' % (64 + 2 * k))
        p('buffer_store_dword v2, v1, s[4:7], s8 offen offset:%d' % (4 * k))
    p('v_mov_b32 v2, s9')
    p('buffer_store_dword v2, v1, s[4:7], s8 offen offset:120')
    p('v_mov_b32 v2, s10')
    p('buffer_store_dword v2, v1, s[4:7], s8 offen offset:124')
    return p.l

cscale = (96.0 ** -0.5) * math.log2(math.e)
CS_HEX = '0x%08x' % struct.unpack('<I', struct.pack('<f', cscale))[0]

for idx in range(2916):
    assert (idx * 1214) >> 16 == idx // 54
for k in range(216 + 24):
    assert (k * 57) >> 9 == k // 9

ROWJ = 72576 - 1344


def vr(b, n=4):
    return 'v[%d:%d]' % (b, b + n - 1)


vXA0, vXA1, vXB0, vXB1, vT0, vT1, vT3, vW, vLin = 4, 5, 6, 7, 8, 9, 10, 11, 12
XF = 14
WB = 62
NWB = 3
TB = 74
ACCA, ACCB = 98, 114
S0 = 130
TMP = 162
XRAW = 128
GOFF = 118

sW = 3
sLOM = 60


def xf(j, s):
    return XF + 24 * j + 4 * s


def goff_code(p, G, t0):
    l16, a, z = t0, t0 + 1, t0 + 2
    sw = [t0 + 3, t0 + 4, t0 + 5]
    p('v_lshlrev_b32 v%d, 4, v0' % l16)
    p('v_lshrrev_b32 v%d, 4, v0' % a)
    p('v_mul_u32_u24 v%d, 43, v%d' % (a, a))
    p('s_mov_b32 s40, 0x30')
    for m in range(3):
        if m:
            p('v_add_u32 v%d, %d, v%d' % (z, 4 * m * 43, a))
            p('v_lshrrev_b32 v%d, 3, v%d' % (z, z))
        else:
            p('v_lshrrev_b32 v%d, 3, v%d' % (z, a))
        p('v_bitop3_b32 v%d, v%d, s40, v%d bitop3:0x6a' % (sw[m], z, l16))
    for n in range(10):
        r0 = (64 * n) // 84
        thr = 84 * (r0 + 1) - 64 * n
        if thr >= 64:
            p('v_mov_b32 v%d, v%d' % (G + n, sw[n % 3]))
        else:
            mask = (~((1 << thr) - 1)) & 0xFFFFFFFFFFFFFFFF
            add = ROWJ if n < 9 else 0x40000000
            p('s_mov_b32 s42, 0x%x' % (mask & 0xffffffff))
            p('s_mov_b32 s43, 0x%x' % (mask >> 32))
            p('v_add_u32 v%d, 0x%x, v%d' % (z, add, sw[n % 3]))
            p('v_cndmask_b32 v%d, v%d, v%d, s[42:43]' % (G + n, sw[n % 3], z))


def prologue():
    p = Prog()
    p('s_cmp_ge_u32 s2, %d' % NWG)
    p('s_cbranch_scc1 L_end')
    p.extend(stamp(True))
    p.extend(stamp())
    p('s_load_dwordx4 s[4:7], s[0:1], 0')
    p('s_load_dwordx4 s[8:11], s[0:1], 16')
    p('v_lshrrev_b32 v1, 6, v0')
    p('v_readfirstlane_b32 s3, v1')
    p('v_and_b32 v0, 63, v0')
    p('s_cmp_lt_u32 s3, 9')
    p('s_cselect_b32 s25, 0, 9')
    p('s_cselect_b32 s26, 0x30, 0')
    p('s_sub_u32 s25, s3, s25')
    p('s_mul_i32 s27, s25, 24')
    p('s_mul_i32 s28, s25, 6144')
    p('s_add_u32 s29, s28, 4096')
    p('v_lshlrev_b32 v2, 4, v0')
    p('v_lshrrev_b32 v1, 4, v0')
    p('v_add_u32 v1, s27, v1')
    p('v_mul_u32_u24 v1, 57, v1')
    for i in range(6):
        t = 4 + i
        if i:
            p('v_add_u32 v%d, %d, v1' % (t, 228 * i))
            p('v_lshrrev_b32 v%d, 5, v%d' % (t, t))
        else:
            p('v_lshrrev_b32 v%d, 5, v1' % t)
        p('v_bitop3_b32 v%d, v%d, s26, v2 bitop3:0x6a' % (t, t))
    p('s_mul_i32 s27, s3, 6144')
    p('s_add_u32 s27, s27, %d' % RAW)
    p('s_mov_b32 m0, s27')
    p('s_mul_i32 s24, s2, 12')
    p('s_add_u32 s24, s24, s3')
    p('s_mul_i32 s25, s24, 1214')
    p('s_lshr_b32 s25, s25, 16')
    p('s_mul_i32 s44, s25, 54')
    p('s_sub_u32 s24, s24, s44')
    p('s_mul_i32 s24, s24, 1344')
    p('s_mul_i32 s25, s25, 508032')
    p('s_add_u32 s24, s24, s25')
    for n in range(10):
        r0 = (64 * n) // 84
        p('s_add_u32 s%d, s24, %d' % (30 + n, 1024 * n + ROWJ * r0))
    p('s_mov_b32 s14, %d' % XBYTES)
    p('s_mov_b32 s15, 0x20000')
    p('s_mov_b32 s18, %d' % XBYTES)
    p('s_mov_b32 s19, 0x20000')
    p('s_mov_b32 s23, 0x20000')
    p('s_movk_i32 s22, 18432')
    p('s_cmp_lt_u32 s3, 9')
    p('s_cselect_b32 s22, 55296, s22')
    p('s_waitcnt lgkmcnt(0)')
    p('s_cselect_b32 s20, s6, s8')
    p('s_cselect_b32 s21, s7, s9')
    for i in range(4):
        p('buffer_load_dwordx4 v%d, s[20:23], s28 offen offset:%d lds' % (4 + i, 1024 * i))
    p('s_add_u32 s27, s27, 4096')
    p('s_mov_b32 m0, s27')
    for i in range(4, 6):
        p('buffer_load_dwordx4 v%d, s[20:23], s29 offen offset:%d lds' % (4 + i, 1024 * (i - 4)))
    p('s_mov_b32 s12, s4')
    p('s_mov_b32 s13, s5')
    p('s_mov_b32 s16, s10')
    p('s_mov_b32 s17, s11')
    goff_code(p, GOFF, 20)
    for n in range(10):
        p('buffer_load_dwordx4 %s, v%d, s[12:15], s%d offen %s' % (vr(XRAW + 4 * n), GOFF + n, 30 + n, LDFLAG))
    p('v_and_b32 v1, 31, v0')
    p('v_lshrrev_b32 v2, 5, v0')
    p('v_and_b32 v3, 0x13, v1')
    p('v_and_b32 v4, 4, v1')
    p('v_lshl_or_b32 v3, v4, 1, v3')
    p('v_and_b32 v4, 8, v1')
    p('v_lshrrev_b32 v4, 1, v4')
    p('v_or_b32 v3, v3, v4')
    p('s_movk_i32 s40, 576')

    def rowaddr(dst, row):
        p('v_bfe_u32 v4, v%d, 2, 2' % row)
        p('v_xor_b32 v4, v4, v2')
        p('v_lshlrev_b32 v4, 4, v4')
        p('v_mad_u32_u24 v%d, v%d, s40, v4' % (dst, row))
    rowaddr(5, 3)
    rowaddr(6, 1)
    p('s_mul_i32 s44, s3, 43')
    p('s_lshr_b32 s44, s44, 7')
    p('s_mul_i32 s45, s44, 3')
    p('s_sub_u32 s45, s3, s45')
    p('s_mul_i32 s46, s44, 18432')
    p('s_add_u32 s46, s46, %d' % RAW)
    p('s_mul_i32 s47, s45, 18432')
    p('s_add_u32 s47, s47, %d' % (RAW + 192))
    p('v_add_u32 v7, s46, v5')
    p('v_xor_b32 v8, 32, v7')
    p('v_add_u32 v9, s47, v5')
    p('v_xor_b32 v10, 32, v9')
    p('s_add_u32 s48, s46, %d' % (384 - 18432))
    p('v_add_u32 v11, s48, v6')
    p('v_xor_b32 v12, 32, v11')
    p('v_bfe_u32 v4, v0, 2, 2')
    p('v_lshl_add_u32 v4, v2, 3, v4')
    p('v_mul_u32_u24 v13, 0xc0, v4')
    p('v_and_b32 v4, 16, v0')
    p('v_lshl_add_u32 v13, v4, 1, v13')
    p('v_and_b32 v4, 1, v0')
    p('v_lshl_add_u32 v13, v4, 4, v13')
    p('v_and_b32 v4, 2, v0')
    p('v_lshl_add_u32 v13, v4, 2, v13')
    p('s_lshl_b32 s49, s45, 6')
    p('s_add_u32 s49, s49, %d' % RAWO)
    p('v_add_u32 v13, s49, v13')
    p('s_mul_i32 s50, s45, 6144')
    p('s_lshl_b32 s51, s44, 11')
    p('s_add_u32 s50, s50, s51')
    p('v_lshlrev_b32 v3, 4, v0')
    p('v_add_u32 v3, s50, v3')
    p('s_mov_b32 s52, %s' % CS_HEX)
    p.extend(stamp())
    p('s_waitcnt vmcnt(10)')
    p.extend(stamp())
    p('s_barrier')
    p.extend(stamp())
    FA, FB, AC = 14, 38, 62
    p('s_cmp_ge_u32 s3, 9')
    p('s_cbranch_scc1 L_skipM')
    for s in range(6):
        p('ds_read_b128 %s, v%d offset:%d' % (vr(FA + 4 * s), 7 + (s & 1), 64 * (s >> 1)))
        p('ds_read_b128 %s, v%d offset:%d' % (vr(FB + 4 * s), 9 + (s & 1), 64 * (s >> 1)))
    for s in range(6):
        p('v_mfma_f32_32x32x16_bf16 %s, %s, %s, %s' % (vr(AC, 16), vr(FA + 4 * s), vr(FB + 4 * s),
                                                       '0' if s == 0 else vr(AC, 16)))
    for i in range(16):
        p('v_mul_f32 v%d, s52, v%d' % (AC + i, AC + i))
    for i in range(8):
        p('v_cvt_pk_bf16_f32 v%d, v%d, v%d' % (AC + i, AC + 2 * i, AC + 2 * i + 1))
    p('ds_write_b128 v3, %s' % vr(AC))
    p('ds_write_b128 v3, %s offset:1024' % vr(AC + 4))
    p('s_waitcnt lgkmcnt(0)')
    p('s_nop 7')
    p('L_skipM:')
    p('s_cmp_lt_u32 s3, 3')
    p('s_cbranch_scc1 L_skipW')
    AC = 78
    for s in range(6):
        p('ds_read_b128 %s, v%d offset:%d' % (vr(FA + 4 * s), 11 + (s & 1), 64 * (s >> 1)))
        p('ds_read_b64_tr_b16 %s, v13 offset:%d' % (vr(FB + 4 * s, 2), 3072 * s))
        p('ds_read_b64_tr_b16 %s, v13 offset:%d' % (vr(FB + 4 * s + 2, 2), 3072 * s + 768))
    for s in range(6):
        p('v_mfma_f32_32x32x16_bf16 %s, %s, %s, %s' % (vr(AC, 16), vr(FA + 4 * s), vr(FB + 4 * s),
                                                       '0' if s == 0 else vr(AC, 16)))
    for i in range(8):
        p('v_cvt_pk_bf16_f32 v%d, v%d, v%d' % (AC + i, AC + 2 * i, AC + 2 * i + 1))
    p('ds_write_b128 v3, %s offset:%d' % (vr(AC), 18432 - 2048))
    p('ds_write_b128 v3, %s offset:%d' % (vr(AC + 4), 18432 - 1024))
    p('s_waitcnt lgkmcnt(0)')
    p('s_nop 7')
    p('L_skipW:')
    p('s_mul_i32 s53, s3, %d' % XSTR)
    p('s_add_u32 s53, s53, %d' % XBUF0)
    p('s_movk_i32 s40, 192')
    p('v_bfe_u32 v3, v1, 2, 2')
    p('v_xor_b32 v3, v3, v2')
    p('v_lshl_add_u32 v3, v3, 4, s53')
    p('v_mad_u32_u24 v%d, v1, s40, v3' % vXA0)
    p('v_xor_b32 v%d, 32, v%d' % (vXA1, vXA0))
    p('v_add_u32 v13, 32, v1')
    p('v_min_u32 v13, 48, v13')
    p('v_bfe_u32 v3, v13, 2, 2')
    p('v_xor_b32 v3, v3, v2')
    p('v_lshl_add_u32 v3, v3, 4, s53')
    p('v_mad_u32_u24 v%d, v13, s40, v3' % vXB0)
    p('v_xor_b32 v%d, 32, v%d' % (vXB1, vXB0))
    p('v_and_b32 v3, 16, v0')
    p('v_lshlrev_b32 v3, 1, v3')
    p('v_and_b32 v13, 3, v0')
    p('v_lshl_add_u32 v3, v13, 3, v3')
    p('v_add_u32 v%d, s53, v3' % vT3)
    p('v_add_u32 v%d, %d, v%d' % (vT3, 192 * 48, vT3))
    p('v_lshlrev_b32 v13, 4, v2')
    p('v_xor_b32 v3, v3, v13')
    p('v_add_u32 v3, s53, v3')
    p('v_bfe_u32 v13, v0, 2, 2')
    p('v_lshl_add_u32 v13, v2, 2, v13')
    p('v_mad_u32_u24 v%d, v13, s40, v3' % vT0)
    p('v_xor_b32 v%d, 32, v%d' % (vT1, vT0))
    p('v_lshlrev_b32 v%d, 4, v0' % vW)
    p('v_add_u32 v%d, s53, v%d' % (vLin, vW))
    p('s_mov_b32 s%d, -1' % sLOM)
    p('s_mov_b32 s%d, 0' % (sLOM + 1))
    p.extend(stamp())
    p('s_barrier')
    p.extend(stamp())
    if STAMP:
        p('s_waitcnt vmcnt(0)')
    p.extend(stamp())
    for n in range(9):
        p('ds_write_b128 v%d, %s offset:%d' % (vLin, vr(XRAW + 4 * n), 1024 * n))
    p('s_mov_b64 exec, 0xfff')
    p('ds_write_b128 v%d, %s offset:%d' % (vLin, vr(XRAW + 36), 1024 * 9))
    p('s_mov_b64 exec, -1')
    return p.l


class WStream:
    def __init__(self):
        self.k = 0

    def buf(self, k):
        return WB + 4 * (k % NWB)


def proj(fragbase, bops, accs, cvt_dst, ws, post=None, nextfrags=()):
    p = Prog()
    seq = [(a, s) for a in range(3) for s in range(6)]
    offs = [fragbase + (a * 6 + s) * 1024 for a, s in seq] + list(nextfrags)
    pend = []
    for i, (a, s) in enumerate(seq):
        acc = accs[a]
        p('v_mfma_f32_32x32x16_bf16 %s, %s, %s, %s' % (vr(acc, 16), vr(ws.buf(ws.k)), vr(bops[s]),
                                                       '0' if s == 0 else vr(acc, 16)))
        nxt = i + NWB
        if nxt < len(offs):
            p('ds_read_b128 %s, v%d offset:%d' % (vr(ws.buf(ws.k)), vW, offs[nxt]))
        ws.k += 1
        if s >= 2 and pend:
            for _ in range(2):
                if pend:
                    p.l.append(pend.pop(0))
            if s == 5:
                p.l.extend(pend)
                pend = []
        if s == 5:
            q = Prog()
            for k in range(8):
                q('v_cvt_pk_bf16_f32 v%d, v%d, v%d' % (cvt_dst[a] + k, acc + 2 * k, acc + 2 * k + 1))
            if post:
                q.extend(post(a))
            pend = q.l
    return p.l, pend


def prefetch_w(ws, offs):
    p = Prog()
    for i, o in enumerate(offs):
        p('ds_read_b128 %s, v%d offset:%d' % (vr(ws.buf(ws.k + i)), vW, o))
    return p.l


def s_gemm(S):
    p = Prog()
    for kt in range(2):
        for s in range(6):
            acc = S + 16 * kt
            p('v_mfma_f32_32x32x16_bf16 %s, %s, %s, %s' % (vr(acc, 16), vr(xf(kt, s)), vr(TB + 4 * s),
                                                           '0' if s == 0 else vr(acc, 16)))
    return p.l


def softmax(B):
    p = Prog()
    m0, m1, m2, t = TMP, TMP + 1, TMP + 2, TMP + 3
    p('v_max3_f32 v%d, v%d, v%d, v%d' % (m0, B, B + 1, B + 2))
    p('v_max3_f32 v%d, v%d, v%d, v%d' % (m1, B + 3, B + 4, B + 5))
    p('v_max3_f32 v%d, v%d, v%d, v%d' % (m2, B + 6, B + 7, B + 8))
    k = 9
    ms = [m0, m1, m2]
    i = 0
    while k < 25:
        p('v_max3_f32 v%d, v%d, v%d, v%d' % (ms[i % 3], ms[i % 3], B + k, B + k + 1))
        k += 2
        i += 1
    p('v_max3_f32 v%d, v%d, v%d, v%d' % (m0, m0, m1, m2))
    p('v_mov_b32 v%d, v%d' % (t, m0))
    p('v_permlane32_swap_b32 v%d, v%d' % (m0, t))
    p('v_max_f32 v%d, v%d, v%d' % (m0, m0, t))
    for k in range(25):
        p('v_sub_f32 v%d, v%d, v%d' % (B + k, B + k, m0))
        if k >= 1:
            p('v_exp_f32 v%d, v%d' % (B + k - 1, B + k - 1))
        if k >= 5:
            kk = k - 3
            acc = [m1, m2][kk & 1]
            if kk < 4:
                p('v_add_f32 v%d, v%d, v%d' % (acc, B + kk - 2, B + kk))
            else:
                p('v_add_f32 v%d, v%d, v%d' % (acc, acc, B + kk))
    p('v_exp_f32 v%d, v%d' % (B + 24, B + 24))
    p('v_add_f32 v%d, v%d, v%d' % (m1, m1, B + 22))
    p('v_add_f32 v%d, v%d, v%d' % (m2, m2, B + 23))
    p('v_cndmask_b32 v%d, 0, v%d, s[%d:%d]' % (B + 24, B + 24, sLOM, sLOM + 1))
    p('v_add_f32 v%d, v%d, v%d' % (m1, m1, m2))
    p('v_add_f32 v%d, v%d, v%d' % (m1, m1, B + 24))
    p('v_mov_b32 v%d, v%d' % (t, m1))
    p('v_permlane32_swap_b32 v%d, v%d' % (m1, t))
    p('v_add_f32 v%d, v%d, v%d' % (m1, m1, t))
    p('v_rcp_f32 v%d, v%d' % (m1, m1))
    for k in range(12):
        p('v_mul_f32 v%d, v%d, v%d' % (B + 2 * k, B + 2 * k, m1))
        p('v_mul_f32 v%d, v%d, v%d' % (B + 2 * k + 1, B + 2 * k + 1, m1))
        if k >= 1:
            p('v_cvt_pk_bf16_f32 v%d, v%d, v%d' % (B + k - 1, B + 2 * k - 2, B + 2 * k - 1))
    p('v_mul_f32 v%d, v%d, v%d' % (B + 24, B + 24, m1))
    p('v_cvt_pk_bf16_f32 v%d, v%d, v%d' % (B + 11, B + 22, B + 23))
    p('v_cvt_pk_bf16_f32 v%d, v%d, 0' % (B + 12, B + 24))
    for k in (13, 14, 15):
        p('v_mov_b32 v%d, 0' % (B + k))
    return p.l


def xt(a, s):
    return XF + 16 * a + 4 * s


def xt_reads():
    p = Prog()
    for a in range(3):
        for s in range(3):
            p('ds_read_b64_tr_b16 %s, v%d offset:%d' % (vr(xt(a, s), 2), vT0, 3072 * s + 64 * a))
            p('ds_read_b64_tr_b16 %s, v%d offset:%d' % (vr(xt(a, s) + 2, 2), vT1, 3072 * s + 64 * a + 1536))
        p('ds_read_b64_tr_b16 %s, v%d offset:%d' % (vr(xt(a, 3), 2), vT3, 64 * a))
    return p.l


def y_gemm(P, accs):
    p = Prog()
    pend = []
    for a in range(3):
        for s in range(4):
            p('v_mfma_f32_32x32x16_bf16 %s, %s, %s, %s' % (vr(accs[a], 16), vr(xt(a, s)), vr(P + 4 * s),
                                                           '0' if s == 0 else vr(accs[a], 16)))
            if s >= 2 and pend:
                for _ in range(4):
                    p.l.append(pend.pop(0))
        q = Prog()
        for k in range(8):
            q('v_cvt_pk_bf16_f32 v%d, v%d, v%d' % (TB + 8 * a + k, accs[a] + 2 * k, accs[a] + 2 * k + 1))
        pend = q.l
    return p.l, pend


def outwrite(j, accs):
    def post(a):
        q = Prog()
        a0, a1 = (vXA0, vXA1) if j == 0 else (vXB0, vXB1)
        q('ds_write_b128 v%d, %s offset:%d' % (a0, vr(accs[a]), 64 * a))
        q('ds_write_b128 v%d, %s offset:%d' % (a1, vr(accs[a] + 4), 64 * a))
        return q.l
    return post


def main_phase():
    out = []
    ws = WStream()
    MT, WV = 0, 18432
    first = [MT + 1024 * i for i in range(NWB)]
    wfirst = [WV + 1024 * i for i in range(NWB)]
    p = Prog()
    for j in range(2):
        a0, a1 = (vXA0, vXA1) if j == 0 else (vXB0, vXB1)
        for s in range(6):
            p('ds_read_b128 %s, v%d offset:%d' % (vr(xf(j, s)), a0 if (s & 1) == 0 else a1, 64 * (s >> 1)))
        if j == 0:
            p.extend(prefetch_w(ws, first))
    out += p.l
    tdst = [TB, TB + 8, TB + 16]
    l, pend = proj(MT, [xf(0, s) for s in range(6)], [ACCA, ACCB, ACCA], tdst, ws, nextfrags=first)
    out += l + pend
    out += s_gemm(S0)
    out += stamp()
    l, pend = proj(MT, [xf(1, s) for s in range(6)], [ACCA, ACCB, ACCA], tdst, ws, nextfrags=wfirst)
    mf = l + pend + s_gemm(ACCA)
    out += merge(mf, softmax(S0), RATIO)
    out += stamp()
    out += xt_reads()
    l, pend = y_gemm(S0, [S0 + 16, TB + 8, S0 + 16])
    mf = l + pend
    oacc = [S0, S0 + 16, S0]
    l, pend = proj(WV, [TB + 4 * s for s in range(6)], oacc, oacc, ws, post=outwrite(0, oacc), nextfrags=wfirst)
    mf += l + pend
    out += merge(mf, softmax(ACCA), RATIO)
    out += stamp()
    l, pend = y_gemm(ACCA, [ACCB, TB + 8, ACCB])
    out += l + pend
    oacc = [S0, S0 + 16, S0]
    l, pend = proj(WV, [TB + 4 * s for s in range(6)], oacc, oacc, ws, post=outwrite(1, oacc))
    out += l + pend
    out += stamp()
    p = Prog()
    G = 98
    goff_code(p, G, 110)
    for n in range(10):
        p('ds_read_b128 %s, v%d offset:%d' % (vr(XF + 4 * n), vLin, 1024 * n))
    for n in range(10):
        p('buffer_store_dwordx4 %s, v%d, s[16:19], s%d offen %s' % (vr(XF + 4 * n), G + n, 30 + n, STFLAG))
    out += p.l
    out += stamp()
    out += stamp_dump()
    return out


def build():
    body = finalize(prologue() + main_phase())
    hdr = open(os.path.join(os.path.dirname(os.path.abspath(__file__)), 'header.txt')).read()
    s = hdr
    s += '; @launch grid=(%d,1,1) block=(768,1,1) lds=%d\n' % (NWG, LDS)
    s += '.amdgcn_target "amdgcn-amd-amdhsa--gfx950"\n.text\n.globl %s_kernel\n.p2align 8\n' % NAME
    s += '.type %s_kernel,@function\n%s_kernel:\n' % (NAME, NAME)
    s += render(body)
    s += 'L_end:\n    s_endpgm\n'
    s += '''.section .rodata,"a"
.p2align 6
.amdhsa_kernel %s_kernel
  .amdhsa_next_free_vgpr 168
  .amdhsa_next_free_sgpr 100
  .amdhsa_accum_offset 168
  .amdhsa_group_segment_fixed_size 0
  .amdhsa_kernarg_size 48
  .amdhsa_user_sgpr_count 2
  .amdhsa_user_sgpr_kernarg_segment_ptr 1
  .amdhsa_system_sgpr_workgroup_id_x 1
.end_amdhsa_kernel
''' % NAME
    print(stats(body), file=sys.stderr)
    return s


if __name__ == '__main__':
    open(sys.argv[1], 'w').write(build())
```

```python
import re

REG_RE = re.compile(r'\b([vsa])(?:\[(\d+):(\d+)\]|(\d+)\b)')

TRANS = ('v_exp_f32', 'v_log_f32', 'v_rcp_f32', 'v_rsq_f32', 'v_sqrt_f32', 'v_sin_f32', 'v_cos_f32')


def regs_of(tok):
    out = []
    tok = tok.strip()
    if tok in ('vcc', 'exec', 'm0', 'scc'):
        return [(tok, 0)]
    if tok in ('vcc_lo', 'vcc_hi'):
        return [('vcc', 0)]
    if tok in ('exec_lo', 'exec_hi'):
        return [('exec', 0)]
    for m in REG_RE.finditer(tok):
        k = m.group(1)
        if m.group(4) is not None:
            out.append((k, int(m.group(4))))
        else:
            out.extend((k, i) for i in range(int(m.group(2)), int(m.group(3)) + 1))
    return out


def split_ops(s):
    ops, depth, cur = [], 0, ''
    for ch in s:
        if ch == '[':
            depth += 1
        if ch == ']':
            depth -= 1
        if ch == ',' and depth == 0:
            ops.append(cur.strip())
            cur = ''
        else:
            cur += ch
    if cur.strip():
        ops.append(cur.strip())
    return ops


class Ins:
    def __init__(self, text, tag=None):
        self.text = text.strip()
        self.tag = tag
        t = self.text.split(';')[0].strip()
        parts = t.split(None, 1)
        self.op = parts[0]
        rest = parts[1] if len(parts) > 1 else ''
        self.ops = split_ops(rest)
        op = self.op
        self.reads, self.writes = [], []
        self.kind = 'other'
        self.mfma_c = []
        self.mfma_ab = []
        o = self.ops
        if op.endswith(':'):
            self.kind = 'label'
        elif op.startswith('v_mfma'):
            self.kind = 'mfma'
            self.passes = 8 if '32x32x16' in op else 4
            self.writes = regs_of(o[0])
            self.mfma_ab = regs_of(o[1]) + regs_of(o[2])
            self.mfma_c = regs_of(o[3].split()[0])
            self.reads = self.mfma_ab + self.mfma_c + [('exec', 0)]
        elif op.startswith('v_'):
            base = op.replace('_e32', '').replace('_e64', '')
            self.kind = 'trans' if base in TRANS else 'valu'
            lastfix = [x.split()[0] if i == len(o) - 1 else x for i, x in enumerate(o)]
            if base.startswith('v_permlane') and 'swap' in base:
                self.writes = regs_of(lastfix[0]) + regs_of(lastfix[1])
                self.reads = list(self.writes)
                self.kind = 'permlane'
            elif base.startswith('v_cmp'):
                self.writes = regs_of(lastfix[0])
                for x in lastfix[1:]:
                    self.reads += regs_of(x)
            elif base in ('v_readfirstlane_b32', 'v_readlane_b32'):
                self.writes = regs_of(lastfix[0])
                for x in lastfix[1:]:
                    self.reads += regs_of(x)
                self.kind = 'readlane'
            else:
                self.writes = regs_of(lastfix[0])
                for x in lastfix[1:]:
                    self.reads += regs_of(x)
                if base in ('v_fmac_f32', 'v_dot2c_f32_bf16', 'v_pk_fmac_f16'):
                    self.reads += self.writes
                if base == 'v_cndmask_b32' and len(o) == 3:
                    self.reads.append(('vcc', 0))
                if 'dpp' in op or 'row_' in t or 'quad_perm' in t:
                    self.dpp = True
            self.reads.append(('exec', 0))
        elif op.startswith('ds_read'):
            self.kind = 'ds_read'
            self.writes = regs_of(o[0])
            self.reads = regs_of(o[1].split()[0]) + [('exec', 0)]
        elif op.startswith('ds_write') or op.startswith('ds_add'):
            self.kind = 'ds_write'
            for x in o:
                self.reads += regs_of(x.split()[0])
            self.reads.append(('exec', 0))
        elif op.startswith('ds_bpermute') or op.startswith('ds_swizzle'):
            self.kind = 'ds_read'
            self.writes = regs_of(o[0])
            for x in o[1:]:
                self.reads += regs_of(x.split()[0])
        elif op.startswith('buffer_load') or op.startswith('global_load'):
            islds = re.search(r'\blds\b', t) is not None or 'load_lds' in op
            if islds:
                self.kind = 'dma'
                for x in o:
                    self.reads += regs_of(x.split()[0])
                self.reads.append(('m0', 0))
            else:
                self.kind = 'vload'
                self.writes = regs_of(o[0])
                for x in o[1:]:
                    self.reads += regs_of(x.split()[0])
            self.reads.append(('exec', 0))
        elif op.startswith('buffer_store') or op.startswith('global_store') or op.startswith('buffer_atomic'):
            self.kind = 'vstore'
            for x in o:
                self.reads += regs_of(x.split()[0])
            self.store_data = regs_of(o[0]) if op.startswith('buffer') else regs_of(o[1])
            self.wide = ('x4' in op) or ('x3' in op)
            self.reads.append(('exec', 0))
        elif op.startswith('s_load') or op.startswith('s_memtime') or op.startswith('s_memrealtime'):
            self.kind = 'smem'
            self.writes = regs_of(o[0])
            for x in o[1:]:
                self.reads += regs_of(x.split()[0])
        elif op == 's_waitcnt':
            self.kind = 'waitcnt'
        elif op == 's_barrier':
            self.kind = 'barrier'
        elif op == 's_nop':
            self.kind = 'nop'
            self.n = int(o[0], 0) + 1
        elif op.startswith('s_cbranch') or op == 's_branch':
            self.kind = 'branch'
            if 'scc' in op:
                self.reads = [('scc', 0)]
        elif op in ('s_endpgm', 's_setprio', 's_sleep'):
            self.kind = 'other'
        elif op.startswith('s_cmp'):
            self.kind = 'salu'
            for x in o:
                self.reads += regs_of(x)
            self.writes = [('scc', 0)]
        elif op.startswith('s_'):
            self.kind = 'salu'
            self.writes = regs_of(o[0])
            for x in o[1:]:
                self.reads += regs_of(x)
            if op.startswith('s_cselect') or op.startswith('s_addc'):
                self.reads.append(('scc', 0))
            if not (op.startswith('s_mov') or op.startswith('s_cselect') or op.startswith('s_mul')
                    or op.startswith('s_getreg')):
                self.writes.append(('scc', 0))
        else:
            raise ValueError('unknown instruction ' + text)
        self.rset = set(self.reads)
        self.wset = set(self.writes)

    def is_valu(self):
        return self.kind in ('valu', 'trans', 'permlane', 'readlane')

    def states(self):
        if self.kind == 'nop':
            return self.n
        if self.kind == 'label':
            return 0
        return 1

    def __repr__(self):
        return self.text


def parse_wait(ins):
    vm = lg = None
    m = re.search(r'vmcnt\((\d+)\)', ins.text)
    if m:
        vm = int(m.group(1))
    m = re.search(r'lgkmcnt\((\d+)\)', ins.text)
    if m:
        lg = int(m.group(1))
    return vm, lg


def insert_waits(prog):
    out = []
    lg = []
    vm = []
    for ins in prog:
        if ins.kind == 'waitcnt':
            v, l = parse_wait(ins)
            if v is not None:
                vm = vm[len(vm) - v:] if v < len(vm) else vm
                if v == 0:
                    vm = []
            if l is not None:
                if any(x.kind == 'smem' for x in lg) and l != 0:
                    pass
                else:
                    lg = lg[len(lg) - l:] if l < len(lg) else lg
                    if l == 0:
                        lg = []
            out.append(ins)
            continue
        touch = ins.rset | ins.wset
        need_l = need_v = None
        for i, p in enumerate(lg):
            if p.wset & touch:
                n = len(lg) - 1 - i
                if p.kind == 'smem' or any(x.kind == 'smem' for x in lg):
                    n = 0
                need_l = n if need_l is None else min(need_l, n)
        for i, p in enumerate(vm):
            if p.wset & touch:
                n = len(vm) - 1 - i
                need_v = n if need_v is None else min(need_v, n)
        if need_l is not None or need_v is not None:
            s = 's_waitcnt'
            if need_v is not None:
                need_v = min(need_v, 63)
                s += ' vmcnt(%d)' % need_v
                vm = vm[len(vm) - need_v:] if need_v else []
            if need_l is not None:
                need_l = min(need_l, 15)
                s += ' lgkmcnt(%d)' % need_l
                lg = lg[len(lg) - need_l:] if need_l else []
            out.append(Ins(s))
        if ins.kind in ('ds_read', 'ds_write', 'smem'):
            lg.append(ins)
        if ins.kind in ('vload', 'vstore', 'dma'):
            vm.append(ins)
        out.append(ins)
    return out


def vreg(rs):
    return {r for r in rs if r[0] in ('v', 'a')}


def sreg(rs):
    return {r for r in rs if r[0] in ('s', 'vcc')}


def required_distance(p, c):
    need = 0
    pv = p.is_valu()
    if pv:
        pw = vreg(p.wset)
        ps = sreg(p.wset)
        if c.kind == 'mfma' and pw & vreg(c.rset):
            need = max(need, 2)
        if c.kind == 'permlane' and pw & vreg(c.rset):
            need = max(need, 2)
        if getattr(c, 'dpp', False) and pw & vreg(c.rset):
            need = max(need, 2)
        if c.kind == 'readlane' and pw & vreg(c.rset):
            need = max(need, 1)
        if p.kind == 'trans' and c.is_valu() and c.kind != 'trans' and pw & (vreg(c.rset) | vreg(c.wset)):
            need = max(need, 1)
        if ps:
            if c.is_valu() and ps & sreg(c.rset):
                need = max(need, 4 if c.kind == 'readlane' else 2)
            if c.kind in ('vload', 'vstore', 'dma') and ps & sreg(c.rset):
                need = max(need, 5)
            if c.kind in ('salu', 'smem', 'branch') and ps & sreg(c.rset):
                need = max(need, 2)
        if ('exec', 0) in p.wset:
            need = max(need, 5)
    if p.kind == 'mfma':
        d = vreg(p.wset)
        big = p.passes == 8
        if c.kind == 'mfma':
            cc = set(c.mfma_c)
            if d & set(c.mfma_ab):
                need = max(need, 12 if big else 8)
            if d & cc:
                if cc == d and c.passes == p.passes:
                    pass
                else:
                    need = max(need, 10 if big else 6)
            elif d & vreg(c.wset):
                need = max(need, 10 if big else 6)
        elif c.kind not in ('nop', 'label', 'waitcnt'):
            if d & (vreg(c.rset) | vreg(c.wset)):
                need = max(need, 12 if big else 8)
        if c.is_valu() and set(p.mfma_c) & vreg(c.wset):
            need = max(need, 7 if big else 3)
    if p.kind == 'vstore' and p.wide:
        if set(p.store_data) & vreg(c.wset):
            need = max(need, 2 if c.is_valu() else 1)
    if p.kind == 'salu' and ('m0', 0) in p.wset and c.kind == 'dma':
        need = max(need, 1)
    return need


def insert_nops(prog, window=24):
    out = []
    for ins in prog:
        dist = 0
        short = 0
        for p in reversed(out):
            if dist >= window:
                break
            r = required_distance(p, ins)
            if r > dist:
                short = max(short, r - dist)
            dist += p.states()
        while short > 0:
            k = min(short, 16)
            out.append(Ins('s_nop %d' % (k - 1)))
            short -= k
        out.append(ins)
    return out


class Prog:
    def __init__(self):
        self.l = []

    def __call__(self, text, tag=None):
        for line in text.strip().split('\n'):
            line = line.strip()
            if not line or line.startswith(';'):
                continue
            self.l.append(Ins(line, tag))
        return self

    def extend(self, other):
        self.l.extend(other.l if isinstance(other, Prog) else other)


def finalize(prog_list):
    p = insert_waits(prog_list)
    p = insert_nops(p)
    return p


def render(p):
    lines = []
    for i in p:
        if i.kind == 'label':
            lines.append(i.text)
        else:
            lines.append('    ' + i.text)
    return '\n'.join(lines) + '\n'


def merge(main, fill, ratio):
    out = []
    fi = 0
    credit = 0.0
    for m in main:
        out.append(m)
        if m.kind == 'mfma':
            credit += ratio
            while fi < len(fill) and credit > 0:
                f = fill[fi]
                out.append(f)
                credit -= 2.0 if f.kind == 'trans' else 1.0
                fi += 1
    out.extend(fill[fi:])
    return out


def stats(p):
    from collections import Counter
    c = Counter(i.kind for i in p)
    nopstates = sum(i.n for i in p if i.kind == 'nop')
    return dict(c), nopstates


VBASE = 1000


class VReg:
    _next = [VBASE]
    all = {}

    def __init__(self, name, n):
        self.name, self.n = name, n
        self.base = VReg._next[0]
        VReg._next[0] += n + (n & 1)
        for k in range(n):
            VReg.all[self.base + k] = self

    def __getitem__(self, k):
        if isinstance(k, slice):
            return 'v[%d:%d]' % (self.base + k.start, self.base + k.stop - 1)
        return 'v%d' % (self.base + k)

    def __str__(self):
        return 'v%d' % self.base if self.n == 1 else 'v[%d:%d]' % (self.base, self.base + self.n - 1)


def blocks_of(ins):
    s = set()
    for k, r in ins.rset | ins.wset:
        if k == 'v' and r >= VBASE:
            s.add(VReg.all[r])
    return s


def allocate(seq, lo, hi, pre=None, liveout=(), margin=6):
    first, last = {}, {}
    for i, ins in enumerate(seq):
        for b in blocks_of(ins):
            first.setdefault(b, i)
            e = i + (margin if ins.kind == 'mfma' else 0)
            last[b] = max(last.get(b, 0), e)
    assign = dict(pre or {})
    busy_until = {}
    freed_at = {}
    for b, ph in assign.items():
        if b in last:
            for k in range(b.n):
                busy_until[ph + k] = last[b]
    for b in liveout:
        last[b] = 10 ** 9
        if b in assign:
            for k in range(b.n):
                busy_until[assign[b] + k] = last[b]
    order = sorted((b for b in first if b not in assign), key=lambda b: (first[b], -b.n))
    peak = 0
    for b in order:
        t = first[b]
        best = None
        step = 1 if b.n == 1 else 2
        cands = []
        for ph in range(lo + (lo & 1 if step == 2 else 0), hi - b.n + 2, step):
            if all(busy_until.get(ph + k, -1) < t for k in range(b.n)):
                cands.append(ph)
        if not cands:
            live = sorted((x.name for x in assign if last.get(x, -1) >= t))
            raise RuntimeError('out of registers at %d (%s) for %s; live: %s' % (t, seq[t].text, b.name, live))
        if b.n == 1:
            def score(ph):
                q = ph & ~3
                nb = sum(1 for k in range(4) if busy_until.get(q + k, -1) >= t or q + k < lo or q + k > hi)
                return (-nb, -ph)
            best = min(cands, key=score)
        else:
            al = [c for c in cands if c % 4 == 0] or cands
            best = min(al, key=lambda ph: (max(busy_until.get(ph + k, -1) for k in range(b.n)), ph))
        assign[b] = best
        for k in range(b.n):
            busy_until[best + k] = last[b]
        peak = max(peak, sum(1 for r, u in busy_until.items() if u >= t))
    return assign, peak


def rewrite(seq, assign):
    def sub(m):
        if m.group(1) != 'v':
            return m.group(0)
        if m.group(4) is not None:
            r = int(m.group(4))
            if r < VBASE:
                return m.group(0)
            b = VReg.all[r]
            return 'v%d' % (assign[b] + r - b.base)
        a, z = int(m.group(2)), int(m.group(3))
        if a < VBASE:
            return m.group(0)
        b = VReg.all[a]
        return 'v[%d:%d]' % (assign[b] + a - b.base, assign[b] + z - b.base)
    return [Ins(REG_RE.sub(sub, i.text), i.tag) for i in seq]


def interleave(main, fill, per, start=0):
    out, fi, credit, nm = [], 0, 0.0, 0
    for m in main:
        out.append(m)
        if m.kind == 'mfma':
            nm += 1
            if nm > start:
                credit += per
                while fi < len(fill) and credit > 0:
                    f = fill[fi]
                    out.append(f)
                    credit -= 2.0 if f.kind == 'trans' else (1.0 if f.is_valu() else 0.5)
                    fi += 1
    out.extend(fill[fi:])
    return out
```

```python
from asmlib import *

LDS_LAT = 28


def cost(i):
    k = i.kind
    if k in ('trans', 'permlane'):
        return 2
    if k == 'ds_read':
        return 2
    if k == 'ds_write':
        return 6 if 'b128' in i.op else 3
    if k == 'vstore':
        return 5
    if k == 'branch':
        return 3
    return 1


def build_deps(seq):
    lastw, readers = {}, {}
    preds = [set() for _ in seq]
    idx = {id(x): n for n, x in enumerate(seq)}
    for n, i in enumerate(seq):
        for r in i.rset:
            if r == ('exec', 0):
                pass
            if r in lastw:
                preds[n].add(lastw[r])
        for r in i.wset:
            if r in lastw:
                preds[n].add(lastw[r])
            for q in readers.get(r, ()):
                if q != n:
                    preds[n].add(q)
        for r in i.rset:
            readers.setdefault(r, []).append(n)
        for r in i.wset:
            lastw[r] = n
            readers[r] = []
        for a in getattr(i, 'after', ()):
            if id(a) in idx:
                preds[n].add(idx[id(a)])
    return preds


def lat(p, c):
    if p.kind == 'ds_read' and p.wset & (c.rset | c.wset):
        return LDS_LAT
    d = required_distance(p, c)
    if p.kind == 'mfma' and c.kind == 'mfma' and d == 0:
        return 4
    return max(cost(p), d + 1)


def schedule(seq, slack=16, verbose=False, prefix=(), tail_deadline=None):
    n = len(seq)
    preds = build_deps(seq)
    succs = [[] for _ in seq]
    for c in range(n):
        for p in preds[c]:
            succs[p].append(c)
    backbone = [k for k in range(n) if seq[k].kind == 'mfma']
    pos = {k: j for j, k in enumerate(backbone)}
    end = 4 * len(backbone) + 12
    LS = [None] * n
    for k in reversed(range(n)):
        v = 4 * pos[k] if k in pos else getattr(seq[k], 'deadline', end)
        for s in succs[k]:
            v = min(v, LS[s] - lat(seq[k], seq[s]))
        LS[k] = v
    done = [False] * n
    npred = [len(p) for p in preds]
    out = list(prefix)
    nprefix = len(out)
    t = 0
    pipe_free = valu_free = 0
    issue_t = {}
    lgq = []
    bi = 0
    avail = {k for k in range(n) if npred[k] == 0}
    stalls = 0

    def hazard_short(i):
        dist, short = 0, 0
        for p in reversed(out[-24:]):
            r = required_distance(p, i)
            if r > dist:
                short = max(short, r - dist)
            dist += p.states()
        return short

    def unwaited(i):
        touch = i.rset | i.wset
        last = -1
        for j, (q, _) in enumerate(lgq):
            if seq[q].wset & touch:
                last = j
        return last

    def emit_wait(upto):
        nonlocal lgq, t
        j = upto
        while j + 1 < len(lgq) and lgq[j + 1][1] + LDS_LAT <= t:
            j += 1
        left = min(len(lgq) - 1 - j, 15)
        j = len(lgq) - 1 - left
        t = max(t + 1, lgq[upto][1] + LDS_LAT)
        out.append(Ins('s_waitcnt lgkmcnt(%d)' % left))
        lgq = lgq[j + 1:]

    def emit(k):
        nonlocal t, pipe_free, valu_free, bi
        i = seq[k]
        if i.kind == 'mfma':
            t = max(t, pipe_free)
            pipe_free = t + 4
            valu_free = t + 2
            bi += 1
        elif i.is_valu():
            t = max(t, valu_free)
        c = cost(i)
        if i.kind == 'ds_read' and out and out[-1].is_valu():
            c += 1
        issue_t[k] = t
        if i.kind in ('ds_read', 'ds_write'):
            lgq.append((k, t))
        t += c
        out.append(i)
        done[k] = True
        avail.discard(k)
        for s in succs[k]:
            npred[s] -= 1
            if npred[s] == 0:
                avail.add(s)

    def data_ready(k):
        u = unwaited(seq[k])
        return u < 0 or lgq[u][1] + LDS_LAT <= t

    def released(k):
        i = seq[k]
        clock = 4 * bi
        if i.kind == 'ds_read':
            return clock >= LS[k] - getattr(i, 'slack', slack) and len(lgq) < 15
        return clock >= getattr(i, 'release', -10 ** 9)

    while not all(done):
        nxt = backbone[bi] if bi < len(backbone) else None
        m_ok = nxt is not None and nxt in avail and hazard_short(seq[nxt]) == 0
        shadow = out and out[-1].kind == 'mfma'
        if shadow:
            did = False
            for look in backbone[bi:bi + 2]:
                u = unwaited(seq[look])
                if u >= 0 and lgq[u][1] + LDS_LAT <= t + 2:
                    emit_wait(u)
                    did = True
                    break
            if did:
                continue
        fill = [k for k in avail if seq[k].kind != 'mfma' and released(k) and hazard_short(seq[k]) == 0
                and data_ready(k)]
        fill.sort(key=lambda k: (LS[k], k))
        room = pipe_free - t
        if m_ok and unwaited(seq[nxt]) < 0 and room <= 0:
            emit(nxt)
            continue
        pick = None
        mready = m_ok and data_ready(nxt)
        for k in fill:
            i = seq[k]
            c = cost(i)
            start = max(t, valu_free) if i.is_valu() else t
            if i.kind == 'ds_read' and out and out[-1].is_valu():
                c += 1
            if unwaited(i) >= 0:
                c += 1
            if not mready or start + c <= pipe_free:
                pick = k
                break
            if shadow and c > 3 and LS[k] <= 4 * bi + 8:
                pick = k
                break
        if shadow and mready:
            for k in fill:
                i = seq[k]
                if not i.is_valu() and cost(i) <= 3 and unwaited(i) < 0:
                    pick = k
                    break
        if pick is not None:
            u = unwaited(seq[pick])
            if u >= 0:
                emit_wait(u)
            emit(pick)
            continue
        if m_ok:
            u = unwaited(seq[nxt])
            if u >= 0:
                emit_wait(u)
            emit(nxt)
            continue
        cand = [k for k in avail if seq[k].kind != 'mfma' or k == nxt]
        cand.sort(key=lambda k: (LS[k], k))
        prog = False
        for k in cand:
            if hazard_short(seq[k]) == 0 and (seq[k].kind != 'ds_read' or len(lgq) < 15) and data_ready(k):
                u = unwaited(seq[k])
                if u >= 0:
                    emit_wait(u)
                emit(k)
                prog = True
                break
        if prog:
            continue
        hz = [k for k in cand if hazard_short(seq[k]) > 0 and data_ready(k)]
        if hz:
            out.append(Ins('s_nop 0'))
            t += 1
            stalls += 1
            continue
        k = cand[0]
        u = unwaited(seq[k])
        if u < 0:
            u = 0
        emit_wait(u)
    res = []
    for i in out[nprefix:]:
        if i.kind == 'nop' and res and res[-1].kind == 'nop' and res[-1].n + i.n <= 16:
            res[-1] = Ins('s_nop %d' % (res[-1].n + i.n - 1))
        else:
            res.append(i)
    if verbose:
        print('schedule: %d slots (%d cycles), %d mfma, nop states %d' % (t, 4 * t, len(backbone), stalls),
              file=__import__('sys').stderr)
    return res, t
```

```python
import sys, struct, math, os
sys.path.insert(0, os.path.dirname(os.path.abspath(__file__)))
from asmlib import *
import sched

NAME = 'standalone__swin_window_attn__vision'
XBYTES = 27433728
NWG = 243
MT, WV = 0, 18432
WVJ = 3072 + 16
XBUF0, XSTR = 36864 + 128, 9408
RAW = XBUF0 + 4 * XSTR
RAWO = RAW + 55296
SCR = XBUF0 + 12 * XSTR
SSTR = 704
UT, YL, PS = SCR, SCR + 384, SCR + 576
FLG = SCR + 12 * SSTR
LDS = FLG + 128
ROWS = 72576
ROWJ = ROWS - 1344
GENJ = 18 * 508032
LOFF = 6 * ROWS + 6 * 192

opts = dict(a.split('=', 1) for a in sys.argv[2:] if '=' in a)
LDFLAG = opts.get('ld', '').replace('+', ' ')
STFLAG = opts.get('st', 'sc1').replace('+', ' ')
STAMP = int(opts.get('stamp', '0'))
AMP = int(opts.get('amp', '-1'))
FAST = int(opts.get('fast', '1'))
FORCESLOW = int(opts.get('forceslow', '0'))
LONE = int(opts.get('lone', '0'))
SLACK = int(opts.get('slack', '16'))
ORDER = opts.get('order', 'a')
sched.LDS_LAT = int(opts.get('ldslat', '28'))

cscale = (96.0 ** -0.5) * math.log2(math.e)
CS_HEX = '0x%08x' % struct.unpack('<I', struct.pack('<f', cscale))[0]
for idx in range(2916):
    assert (idx * 1214) >> 16 == idx // 54
for e in range(96):
    assert (e * 43) >> 8 == e // 6

MF16 = 'v_mfma_f32_16x16x32_bf16'

PIN = {}


def pin(name, r):
    v = VReg(name, 1)
    PIN[v] = r
    v.ph = r
    return v


aW, aT0, aT1, aT3, aYLw, aFw, aPSr, aX, aX3, aE, aPSw, vNINF = [
    pin(n, k + 5) for k, n in enumerate('aW aT0 aT1 aT3 aYLw aFw aPSr aX aX3 aE aPSw vNINF'.split())]
vS = {k: pin('vS%d' % k, k) for k in (1, 2, 3, 4)}
LO, HI = 1, 167
XOFF = 152
XL = 140
sBUF, sBASE0 = 60, 61
sROW = 30
sG0, sG1, sG2, sL48, sBAD = 50, 52, 54, 56, 58

nstamp = [0]


def vr(b, n=4):
    return 'v[%d:%d]' % (b, b + n - 1)


def stamp(real=False):
    if not STAMP and AMP < 0:
        return []
    k = nstamp[0]
    nstamp[0] += 1
    p = Prog()
    if AMP >= 0:
        if k == 0 or k == AMP:
            p('s_memrealtime s[%d:%d]' % ((64, 65) if k == 0 else (68, 69)))
            p('s_waitcnt lgkmcnt(0)')
        return p.l
    p('%s s[%d:%d]' % ('s_memrealtime' if real else 's_memtime', 64 + 2 * k, 65 + 2 * k))
    p('s_waitcnt lgkmcnt(0)')
    return p.l


def stamp_dump():
    p = Prog()
    if AMP >= 0:
        p('s_waitcnt vmcnt(0)')
        p.extend(stamp())
        p('s_sub_u32 s68, s68, s64')
        p('s_mul_i32 s68, s68, 10')
        p('s_add_u32 s68, s68, 4000')
        p('s_min_u32 s68, s68, 40000')
        p('L_spin:')
        p('s_memrealtime s[66:67]')
        p('s_waitcnt lgkmcnt(0)')
        p('s_sub_u32 s66, s66, s64')
        p('s_cmp_lt_u32 s66, s68')
        p('s_cbranch_scc1 L_spin')
        return p.l
    if not STAMP:
        return []
    p('s_waitcnt vmcnt(0)')
    p.extend(stamp())
    p.extend(stamp(True))
    p('s_load_dwordx2 s[4:5], s[0:1], 40')
    p('s_mul_i32 s6, s2, 12')
    p('s_add_u32 s6, s6, s3')
    p('s_lshl_b32 s8, s6, 7')
    p('s_mov_b32 s6, 0x1000000')
    p('s_mov_b32 s7, 0x20000')
    p('s_getreg_b32 s9, hwreg(HW_REG_HW_ID)')
    p('s_getreg_b32 s10, hwreg(HW_REG_XCC_ID)')
    p('s_waitcnt lgkmcnt(0)')
    p('s_mov_b64 exec, 1')
    p('v_mov_b32 v1, 0')
    for k in range(nstamp[0]):
        p('v_mov_b32 v2, s%d' % (64 + 2 * k))
        p('buffer_store_dword v2, v1, s[4:7], s8 offen offset:%d' % (4 * k))
    p('v_mov_b32 v2, s9')
    p('buffer_store_dword v2, v1, s[4:7], s8 offen offset:120')
    p('v_mov_b32 v2, s10')
    p('buffer_store_dword v2, v1, s[4:7], s8 offen offset:124')
    return p.l


def x_dma(p):
    for n in range(10):
        r0 = (64 * n) // 84
        if n % 4 == 0:
            p('s_add_u32 s40, s%d, %d' % (sBUF, 1024 * n))
            p('s_mov_b32 m0, s40')
        p('s_add_u32 s41, s%d, %d' % (sROW, 1024 * (n & ~3) + ROWJ * r0))
        if n == 9:
            p('s_mov_b64 exec, 0xfff')
        p('buffer_load_dwordx4 v%d, s[12:15], s41 offen offset:%d %s lds'
          % (XOFF + n if n < 9 else aW.ph, 1024 * (n & 3), LDFLAG))
    p('s_mov_b64 exec, -1')


def x_offsets(p, t):
    sw = [XOFF, XOFF + 4, XOFF + 8]
    p('v_lshrrev_b32 v%d, 4, v0' % t)
    p('v_mul_u32_u24 v%d, 43, v%d' % (t, t))
    p('s_mov_b32 s41, 0x30')
    for m in range(3):
        if m:
            p('v_add_u32 v%d, %d, v%d' % (t + 1, 4 * m * 43, t))
            p('v_lshrrev_b32 v%d, 3, v%d' % (t + 1, t + 1))
        else:
            p('v_lshrrev_b32 v%d, 3, v%d' % (t + 1, t))
        p('v_bitop3_b32 v%d, v%d, s41, v%d bitop3:0x6a' % (sw[m], t + 1, aW.ph))
        p('v_add_u32 v%d, 0x%x, v%d' % (t + 2 + m, ROWJ, sw[m]))
    for n in range(9):
        r0 = (64 * n) // 84
        thr = 84 * (r0 + 1) - 64 * n
        if thr >= 64:
            assert XOFF + n == sw[n % 3]
        else:
            p('s_lshl_b64 s[42:43], -1, %d' % thr)
            p('v_cndmask_b32 v%d, v%d, v%d, s[42:43]' % (XOFF + n, sw[n % 3], t + 2 + n % 3))


def main_addresses(p, t):
    i, g, a, b, c = t, t + 1, t + 2, t + 3, t + 4
    p('v_and_b32 v%d, 15, v0' % i)
    p('v_lshrrev_b32 v%d, 4, v0' % g)
    p('v_lshlrev_b32 v%d, 4, v0' % aW.ph)
    p('s_movk_i32 s40, 192')
    p('v_and_b32 v%d, 3, v0' % a)
    p('v_bfe_u32 v%d, v0, 2, 2' % b)
    p('v_lshl_add_u32 v%d, v%d, 2, v%d' % (c, a, b))
    p('v_xor_b32 v%d, v%d, v%d' % (aX.ph, g, a))
    p('v_lshl_add_u32 v%d, v%d, 4, s%d' % (aX.ph, aX.ph, sBUF))
    p('v_mad_u32_u24 v%d, v%d, s40, v%d' % (aX.ph, c, aX.ph))
    p('s_add_u32 s41, s%d, 9216' % sBUF)
    p('v_lshl_add_u32 v%d, v%d, 4, s41' % (aX3.ph, g))
    p('v_lshl_add_u32 v%d, v%d, 3, s41' % (aT3.ph, a))
    p('v_lshlrev_b32 v%d, 1, v%d' % (c, b))
    p('v_xor_b32 v%d, v%d, v%d' % (c, c, a))
    p('v_lshl_add_u32 v%d, v%d, 3, s%d' % (aT0.ph, c, sBUF))
    p('v_lshl_add_u32 v%d, v%d, 2, v%d' % (c, b, g))
    p('v_mad_u32_u24 v%d, v%d, s40, v%d' % (aT0.ph, c, aT0.ph))
    p('v_xor_b32 v%d, 32, v%d' % (aT1.ph, aT0.ph))
    p('s_mul_i32 s41, s3, %d' % SSTR)
    p('s_add_u32 s41, s41, %d' % SCR)
    p('v_lshl_add_u32 v%d, v%d, 4, s41' % (aE.ph, g))
    p('v_and_b32 v%d, 1, v0' % c)
    p('v_mad_u32_u24 v%d, v%d, s40, v%d' % (aE.ph, c, aE.ph))
    p('v_lshl_add_u32 v%d, v0, 1, s41' % aPSw.ph)
    p('v_lshl_add_u32 v%d, v%d, 3, s41' % (aPSr.ph, g))
    p('v_lshl_add_u32 v%d, v%d, 2, s41' % (aYLw.ph, i))
    p('s_lshl_b32 s41, s28, 4')
    p('s_lshl_b32 s42, s29, 2')
    p('s_add_u32 s41, s41, s42')
    p('s_add_u32 s41, s41, %d' % (FLG + 16))
    p('v_mov_b32 v%d, s41' % aFw.ph)
    p('v_mov_b32 v%d, 0xff800000' % vNINF.ph)
    p('v_mul_u32_u24 v%d, 12, v%d' % (c, i))
    p('v_mad_u32_u24 v%d, v%d, s40, v%d' % (vS[4].ph, g, c))
    p('v_add_u32 v%d, 0x%x, v%d' % (c, ROWJ, vS[4].ph))
    for thr in (1, 2, 3):
        p('s_lshl_b64 s[42:43], -1, %d' % (16 * thr))
        p('v_cndmask_b32 v%d, v%d, v%d, s[42:43]' % (vS[thr].ph, vS[4].ph, c))
    for k in range(1, 7):
        p('s_add_u32 s%d, s%d, %d' % (sROW + k, sROW, ROWS * k))
    p('s_mov_b32 s16, s10')
    p('s_mov_b32 s17, s11')
    p('s_mov_b32 s18, %d' % XBYTES)
    p('s_mov_b32 s19, 0x20000')
    p('s_mov_b64 s[%d:%d], 0xffff' % (sG0, sG0 + 1))
    p('s_lshl_b64 s[%d:%d], s[%d:%d], 16' % (sG1, sG1 + 1, sG0, sG0 + 1))
    p('s_lshl_b64 s[%d:%d], s[%d:%d], 32' % (sG2, sG2 + 1, sG0, sG0 + 1))
    p('s_lshl_b64 s[%d:%d], 1, 48' % (sL48, sL48 + 1))


def prologue():
    p = Prog()
    p('s_cmp_ge_u32 s2, %d' % NWG)
    p('s_cbranch_scc1 L_end')
    p.extend(stamp(True))
    p.extend(stamp())
    p('s_load_dwordx4 s[4:7], s[0:1], 0')
    p('s_load_dwordx4 s[8:11], s[0:1], 16')
    p('v_lshrrev_b32 v20, 6, v0')
    p('v_readfirstlane_b32 s3, v20')
    p('v_and_b32 v0, 63, v0')
    p('v_lshlrev_b32 v%d, 4, v0' % aW.ph)
    p('s_and_b32 s28, s3, 3')
    p('s_lshr_b32 s29, s3, 2')
    p('s_cmp_lg_u32 s29, 1')
    p('s_cbranch_scc1 L_noW')
    p('s_setprio 3')
    p('v_lshrrev_b32 v22, 5, v0')
    p('s_lshl_b32 s40, s28, 2')
    p('v_add_u32 v23, s40, v22')
    p('v_mul_u32_u24 v23, 57, v23')
    p('s_mov_b32 s41, 0x20')
    p('v_lshrrev_b32 v24, 4, v23')
    p('v_bitop3_b32 v24, v24, s41, v%d bitop3:0x6a' % aW.ph)
    p('v_add_u32 v25, 114, v23')
    p('v_lshrrev_b32 v25, 4, v25')
    p('v_bitop3_b32 v25, v25, s41, v%d bitop3:0x6a' % aW.ph)
    p('s_mov_b32 s22, 55296')
    p('s_mov_b32 s23, 0x20000')
    p('s_mov_b32 s27, 0x20000')
    p('s_lshl_b32 s43, s28, 11')
    p('s_add_u32 s44, s43, %d' % RAW)
    p('s_mul_i32 s45, s28, 6144')
    p('s_add_u32 s46, s45, %d' % RAWO)
    p('s_movk_i32 s26, 18432')
    p('s_movk_i32 s47, 1024')
    p('s_cmp_eq_u32 s28, 3')
    p('s_cselect_b32 s42, 0x20, 0')
    p('s_cselect_b32 s45, 8192, s45')
    p('s_cselect_b32 s46, %d, s46' % (RAW + 8192))
    p('s_cselect_b32 s47, 9216, s47')
    p('s_cselect_b32 s26, s22, s26')
    p('v_xor_b32 v26, s42, v%d' % aW.ph)
    p('s_mov_b32 m0, s44')
    p('s_waitcnt lgkmcnt(0)')
    p('s_mov_b32 s20, s6')
    p('s_mov_b32 s21, s7')
    p('s_cselect_b32 s24, s6, s8')
    p('s_cselect_b32 s25, s7, s9')
    for G in range(6):
        if G:
            p('s_add_u32 s44, s44, 9216')
            p('s_mov_b32 m0, s44')
            p('s_add_u32 s43, s43, 9216')
        p('buffer_load_dwordx4 v24, s[20:23], s43 offen lds')
        p('buffer_load_dwordx4 v25, s[20:23], s43 offen offset:1024 lds')
        p('s_mov_b32 m0, s46')
        p('s_add_u32 s46, s46, s47')
        p('buffer_load_dwordx4 v26, s[24:27], s45 offen lds')
        p('s_add_u32 s45, s45, s47')
    p('s_barrier')
    p('s_setprio 0')
    p('L_noW:')
    p('s_mov_b32 s14, %d' % XBYTES)
    p('s_mov_b32 s15, 0x20000')
    p('s_lshl_b32 s48, s2, 2')
    p('s_add_u32 s40, s48, s28')
    p('s_mul_i32 s41, s40, 1214')
    p('s_lshr_b32 s41, s41, 16')
    p('s_mul_i32 s41, s41, 435456')
    p('s_mul_i32 s40, s40, 1344')
    p('s_add_u32 s%d, s40, s41' % sBASE0)
    p('s_mul_i32 s40, s29, %d' % GENJ)
    p('s_add_u32 s%d, s40, s%d' % (sROW, sBASE0))
    p('s_mul_i32 s%d, s3, %d' % (sBUF, XSTR))
    p('s_add_u32 s%d, s%d, %d' % (sBUF, sBUF, XBUF0))
    p('v_and_b32 v20, 15, v0')
    p('v_lshrrev_b32 v21, 4, v0')
    p('s_waitcnt lgkmcnt(0)')
    p('s_mov_b32 s12, s4')
    p('s_mov_b32 s13, s5')
    p('s_cmp_lg_u32 s29, 2')
    p('s_cbranch_scc1 L_noXL')
    p('v_min_u32 v23, 11, v20')
    p('v_and_b32 v24, 3, v23')
    p('v_add_u32 v24, s48, v24')
    p('v_mul_u32_u24 v25, 1214, v24')
    p('v_lshrrev_b32 v25, 16, v25')
    p('v_mul_u32_u24 v25, 435456, v25')
    p('v_mul_u32_u24 v24, 1344, v24')
    p('v_lshrrev_b32 v23, 2, v23')
    p('v_mul_u32_u24 v23, %d, v23' % GENJ)
    p('v_add3_u32 v23, v23, v24, v25')
    p('v_lshl_add_u32 v23, v21, 4, v23')
    p('s_mov_b32 s41, %d' % LOFF)
    for s in range(3):
        p('buffer_load_dwordx4 %s, v23, s[12:15], s41 offen offset:%d' % (vr(XL + 4 * s), 64 * s))
    p('s_barrier')
    p('v_and_b32 v23, 31, v0')
    p('v_lshlrev_b32 v23, 2, v23')
    p('v_add_u32 v23, %d, v23' % FLG)
    p('v_mov_b32 v24, 0')
    p('ds_write_b32 v23, v24')
    p('L_noXL:')
    x_offsets(p, 22)
    FAa, FBa, FD = 104, 105, 106
    p('s_cmp_ge_u32 s3, 6')
    p('s_cselect_b32 s44, 6, 0')
    p('s_sub_u32 s44, s3, s44')
    p('s_and_b32 s45, s44, 1')
    p('s_lshr_b32 s44, s44, 1')
    p('s_movk_i32 s40, 576')
    p('s_mul_i32 s46, s44, 18432')
    p('s_cmp_ge_u32 s3, 6')
    p('s_cbranch_scc1 L_faW')
    p('v_and_b32 v22, 3, v0')
    p('v_bfe_u32 v23, v0, 2, 2')
    p('v_lshl_add_u32 v22, v23, 3, v22')
    p('v_and_b32 v23, 1, v23')
    p('v_lshlrev_b32 v23, 1, v23')
    p('v_xor_b32 v23, v23, v21')
    p('v_lshlrev_b32 v23, 4, v23')
    p('v_mad_u32_u24 v22, v22, s40, v23')
    p('s_add_u32 s46, s46, %d' % RAW)
    p('v_add_u32 v%d, s46, v22' % FAa)
    p('s_mul_i32 s46, s45, 2304')
    p('s_add_u32 s46, s46, %d' % (RAW + 192))
    p('v_add_u32 v%d, s46, v22' % FBa)
    p('s_mul_i32 s46, s45, 3072')
    p('s_lshl_b32 s47, s44, 10')
    p('s_add_u32 s46, s46, s47')
    for t in range(3):
        p('v_add_u32 v%d, s46, v%d' % (FD + t, aW.ph))
        if t < 2:
            p('s_add_u32 s46, s46, 6144')
    p('s_branch L_fa2')
    p('L_faW:')
    p('v_bfe_u32 v23, v0, 3, 1')
    p('v_lshlrev_b32 v23, 1, v23')
    p('v_xor_b32 v23, v23, v21')
    p('v_lshlrev_b32 v23, 4, v23')
    p('v_mad_u32_u24 v22, v20, s40, v23')
    p('s_add_u32 s46, s46, %d' % (RAW + 384))
    p('v_add_u32 v%d, s46, v22' % FAa)
    p('v_bfe_u32 v22, v0, 2, 2')
    p('v_lshl_add_u32 v22, v21, 3, v22')
    p('v_mul_u32_u24 v22, 0xc0, v22')
    p('v_and_b32 v23, 3, v0')
    p('v_lshl_add_u32 v22, v23, 3, v22')
    p('s_mul_i32 s46, s45, 96')
    p('s_add_u32 s46, s46, %d' % RAWO)
    p('v_add_u32 v%d, s46, v22' % FBa)
    p('s_mul_i32 s46, s45, 48')
    p('s_lshl_b32 s47, s44, 10')
    p('s_add_u32 s47, s47, %d' % WV)
    p('v_lshl_add_u32 v24, v21, 8, s47')
    p('s_movk_i32 s41, %d' % WVJ)
    for t in range(3):
        p('v_add_u32 v22, s46, v20')
        p('v_mul_u32_u24 v23, 43, v22')
        p('v_lshrrev_b32 v23, 8, v23')
        p('v_mad_u32_u24 v22, v22, s41, v24')
        p('v_mul_u32_u24 v23, %d, v23' % (6 * WVJ - 16))
        p('v_sub_u32 v%d, v22, v23' % (FD + t))
        if t < 2:
            p('s_add_u32 s46, s46, 16')
    p('L_fa2:')
    p('s_mov_b32 s49, %s' % CS_HEX)
    p('s_cmp_lg_u32 s29, 0')
    p('s_cbranch_scc1 L_noX0')
    p('s_barrier')
    x_dma(p)
    p('s_branch L_B1')
    p('L_noX0:')
    p('s_waitcnt vmcnt(0) lgkmcnt(0)')
    p('L_B1:')
    p.extend(stamp())
    p('s_barrier')
    p.extend(stamp())
    FA, FB, D = 20, 44, 80
    p('s_cmp_ge_u32 s3, 6')
    p('s_cbranch_scc1 L_frW')
    for ks in range(3):
        for y in range(2):
            p('ds_read_b128 %s, v%d offset:%d' % (vr(FA + 12 * y + 4 * ks), FAa, 2304 * y + 64 * ks))
        for t in range(3):
            p('ds_read_b128 %s, v%d offset:%d' % (vr(FB + 12 * t + 4 * ks), FBa, 18432 * t + 64 * ks))

    def fold_mfma(per):
        for ks in range(3):
            p('s_waitcnt lgkmcnt(%d)' % min(15, per * (2 - ks)))
            for t in range(3):
                for y in range(2):
                    d = vr(D + 8 * t + 4 * y)
                    p('%s %s, %s, %s, %s' % (MF16, d, vr(FA + 12 * y + 4 * ks), vr(FB + 12 * t + 4 * ks),
                                             '0' if ks == 0 else d))
    fold_mfma(5)
    for t in range(3):
        for k in range(8):
            p('v_mul_f32 v%d, s49, v%d' % (D + 8 * t + k, D + 8 * t + k))
        for k in range(4):
            p('v_cvt_pk_bf16_f32 v%d, v%d, v%d' % (FA + 4 * t + k, D + 8 * t + 2 * k, D + 8 * t + 2 * k + 1))
        p('ds_write_b128 v%d, %s' % (FD + t, vr(FA + 4 * t)))
    p('s_branch L_fdone')
    p('L_frW:')
    p('s_waitcnt lgkmcnt(0)')
    for ks in range(3):
        for y in range(2):
            p('ds_read_b128 %s, v%d offset:%d' % (vr(FA + 12 * y + 4 * ks), FAa, 9216 * y + 64 * ks))
        for t in range(3):
            for xx in range(2):
                p('ds_read_b64_tr_b16 %s, v%d offset:%d' % (vr(FB + 12 * t + 4 * ks + 2 * xx, 2), FBa,
                                                           6144 * ks + 768 * xx + 32 * t))
    fold_mfma(8)
    for t in range(3):
        for k in range(4):
            p('v_cvt_pk_bf16_f32 v%d, v%d, v%d' % (FA + 4 * t + k, D + 8 * t + k, D + 8 * t + 4 + k))
        p('ds_write_b128 v%d, %s' % (FD + t, vr(FA + 4 * t)))
    p('L_fdone:')
    p('s_waitcnt lgkmcnt(0)')
    p.extend(stamp())
    p('s_barrier')
    p.extend(stamp())
    p('s_cmp_eq_u32 s29, 0')
    p('s_cbranch_scc1 L_addr')
    p('s_cmp_eq_u32 s29, 1')
    p('s_cbranch_scc1 L_xdma')
    p('s_setprio 3')
    LA, LD = 36, 72
    p('s_and_b32 s40, s3, 1')
    p('s_lshl_b32 s41, s40, 3')
    p('s_cmp_ge_u32 s28, 2')
    p('s_cbranch_scc1 L_L1u')
    p('s_mul_i32 s40, s40, 3072')
    p('v_add_u32 v25, s40, v%d' % aW.ph)
    for t in range(3):
        for s in range(3):
            p('ds_read_b128 %s, v25 offset:%d' % (vr(LA + 12 * t + 4 * s), 6144 * t + 1024 * s))
    p('s_add_u32 s41, s41, 192')
    p('s_branch L_L1c')
    p('L_L1u:')
    p('v_and_b32 v25, 3, v0')
    p('v_lshlrev_b32 v25, 8, v25')
    p('v_lshrrev_b32 v26, 2, v0')
    p('v_lshl_add_u32 v25, v26, 4, v25')
    p('v_add_u32 v25, s41, v25')
    for t in range(3):
        for s in range(3):
            for x in range(2):
                p('ds_read_b64_tr_b16 %s, v25 offset:%d' % (vr(LA + 12 * t + 4 * s + 2 * x, 2),
                                                            6144 * s + 3072 * x + 1024 * t))
    p('L_L1c:')
    p('v_and_b32 v24, 15, v0')
    p('v_min_u32 v24, 11, v24')
    p('v_mul_u32_u24 v24, %d, v24' % SSTR)
    p('v_and_b32 v26, 48, v0')
    p('s_add_u32 s42, s41, %d' % UT)
    p('v_add3_u32 v24, v24, v26, s42')
    p('s_lshl_b32 s42, s28, 2')
    p('s_add_u32 s42, s42, %d' % FLG)
    p('v_mov_b32 v27, s42')
    p('v_mov_b32 v26, 1')
    p('s_waitcnt lgkmcnt(0)')
    for s in range(3):
        for t in range(3):
            p('%s %s, %s, %s, %s' % (MF16, vr(LD + 4 * t), vr(LA + 12 * t + 4 * s), vr(XL + 4 * s),
                                     '0' if s == 0 else vr(LD + 4 * t)))
    for t in range(3):
        p('v_cvt_pk_bf16_f32 v%d, v%d, v%d' % (LD + 4 * t, LD + 4 * t, LD + 4 * t + 1))
        p('v_cvt_pk_bf16_f32 v%d, v%d, v%d' % (LD + 4 * t + 1, LD + 4 * t + 2, LD + 4 * t + 3))
        p('ds_write_b64 v24, %s offset:%d' % (vr(LD + 4 * t, 2), 64 * t))
    p('ds_write_b32 v27, v26')
    p('s_setprio 0')
    p('L_xdma:')
    if LONE:
        p('s_endpgm')
    x_dma(p)
    p('L_addr:')
    main_addresses(p, 22)
    p('v_mov_b32 v24, %d' % FLG)
    p('L_poll1:')
    p('ds_read_b128 v[20:23], v24')
    p('s_waitcnt lgkmcnt(0)')
    p('v_and_b32 v20, v20, v21')
    p('v_and_b32 v22, v22, v23')
    p('v_and_b32 v20, v20, v22')
    p('v_readfirstlane_b32 s40, v20')
    p('s_cmp_eq_u32 s40, 0')
    p('s_cbranch_scc1 L_poll1')
    p.extend(stamp())
    p('s_waitcnt vmcnt(0)')
    p.extend(stamp())
    return p.l


def mf(d, a, b, first):
    return Ins('%s %s, %s, %s, %s' % (MF16, d, a, b, '0' if first else d))


def cvt(d, a, b):
    return Ins('v_cvt_pk_bf16_f32 %s, %s, %s' % (d, a, b))


def xred(p, op, a, tag):
    t = VReg('xr' + tag, 1)
    p('v_mov_b32 %s, %s' % (t, a))
    p('v_permlane32_swap_b32 %s, %s' % (a, t))
    p('%s %s, %s, %s' % (op, a, a, t))
    p('v_mov_b32 %s, %s' % (t, a))
    p('v_permlane16_swap_b32 %s, %s' % (a, t))
    p('%s %s, %s, %s' % (op, a, a, t))


def rowred(p, op, d, z):
    p('%s_dpp %s, %s, %s row_ror:8 row_mask:0xf bank_mask:0xf' % (op, d, z, z))
    for k in (4, 2, 1):
        p('%s_dpp %s, %s, %s row_ror:%d row_mask:0xf bank_mask:0xf' % (op, d, d, d, k))


def window(fast, withL, tag):
    V = lambda n, k=4: VReg(tag + n, k)
    XF = [[V('xf%d_%d' % (t, s)) for s in range(3)] for t in range(4)]
    EA = [V('ea%d' % s) for s in range(3)]
    E = [V('e%d' % t) for t in range(4)]
    W1 = [V('mt%d' % k) for k in range(18)]
    W2 = [V('wv%d' % k) for k in range(18)]
    TB = [[V('tb%d_%d' % (q, s)) for s in range(3)] for q in range(3)]
    S = [[V('s%d_%d' % (q, k)) for k in range(3)] for q in range(3)]
    PB = [[V('pb%d_%d' % (q, k)) for k in range(2)] for q in range(4)]
    XT = [[V('xt%d_%d' % (c, k)) for k in range(2)] for c in range(6)]
    YB = [[V('yb%d_%d' % (q, s)) for s in range(3)] for q in range(3)]
    eL = [V('el%d' % q, 1) for q in range(3)]
    sums = [V('sum%d' % q, 1) for q in range(3)]
    nt = 4 if withL else 3

    def reads():
        p = Prog()
        for t in range(3):
            for s in range(3):
                p('ds_read_b128 %s, %s offset:%d' % (XF[t][s], aX, 3072 * t + 64 * s))
        for s in range(3):
            p('ds_read_b128 %s, %s offset:%d' % (EA[s], aE, 64 * s))
            if withL:
                p('ds_read_b128 %s, %s offset:%d' % (XF[3][s], aX3, 64 * s))
        for k in range(18):
            p('ds_read_b128 %s, %s offset:%d' % (W1[k], aW, MT + 1024 * k))
        for c in range(6):
            a = aT0 if c % 2 == 0 else aT1
            for kt in range(3):
                p('ds_read_b64_tr_b16 %s, %s offset:%d' % (XT[c][kt >> 1][2 * (kt & 1):2 * (kt & 1) + 2], a,
                                                           3072 * kt + 64 * (c >> 1)))
            p('ds_read_b64_tr_b16 %s, %s offset:%d' % (XT[c][1][2:4], aT3, 32 * c))
        for k in range(18):
            p('ds_read_b128 %s, %s offset:%d' % (W2[k], aW, WV + WVJ * (k // 3) + 1024 * (k % 3)))
        return p.l

    def T(qs):
        out = []
        for sp in range(3):
            for x in range(2):
                acc = {q: V('ta%d_%d_%d' % (q, sp, x)) for q in qs}
                for s in range(3):
                    for q in qs:
                        out.append(mf(acc[q], W1[(2 * sp + x) * 3 + s], XF[q][s], s == 0))
                for q in qs:
                    out.append(cvt(TB[q][sp][2 * x], acc[q][0], acc[q][1]))
                    out.append(cvt(TB[q][sp][2 * x + 1], acc[q][2], acc[q][3]))
        return out

    def Emf():
        return [mf(E[t], EA[s], XF[t][s], s == 0) for s in range(3) for t in range(nt)]

    def Lq():
        p = Prog()
        z, m, sm = V('z', 1), V('zm', 1), V('zs', 1)
        p('v_cndmask_b32 %s, %s, %s, s[%d:%d]' % (z, vNINF, E[3][1], sL48, sL48 + 1))
        for t, sg in ((0, sG0), (1, sG1), (2, sG2)):
            p('v_cndmask_b32 %s, %s, %s, s[%d:%d]' % (z, z, E[t][1], sg, sg + 1))
        rowred(p, 'v_max_f32', m, z)
        xred(p, 'v_max_f32', m, tag + 'zm')
        p('v_sub_f32 %s, %s, %s' % (z, z, m))
        p('v_exp_f32 %s, %s' % (z, z))
        rowred(p, 'v_add_f32', sm, z)
        xred(p, 'v_add_f32', sm, tag + 'zs')
        p('v_rcp_f32 %s, %s' % (sm, sm))
        p('v_mul_f32 %s, %s, %s' % (z, z, sm))
        p('v_cvt_pk_bf16_f32 %s, %s, %s' % (z, z, z))
        p('ds_write_b16 %s, %s offset:%d' % (aPSw, z, PS - SCR))
        w = p.l[-1]
        p('ds_read2_b64 %s, %s offset0:72 offset1:76' % (PB[3][0], aPSr))
        p.l[-1].after = [w]
        p('ds_read2_b64 %s, %s offset0:80 offset1:84' % (PB[3][1], aPSr))
        p.l[-1].after = [w]
        return p.l

    def keyL():
        return [Ins('v_cndmask_b32 %s, %s, %s, s[%d:%d]' % (eL[q], vNINF, E[q][0], sG0, sG0 + 1)) for q in range(3)]

    def Smf(q):
        return [mf(S[q][k], XF[k][s], TB[q][s], s == 0) for s in range(3) for k in range(3)]

    def soft(q):
        p = Prog()
        v = [S[q][k][r] for k in range(3) for r in range(4)] + [str(eL[q])]
        if not fast:
            m = V('m%d' % q, 1)
            p('v_max3_f32 %s, %s, %s, %s' % (m, v[12], v[0], v[1]))
            for k in range(2, 12, 2):
                p('v_max3_f32 %s, %s, %s, %s' % (m, m, v[k], v[k + 1]))
            xred(p, 'v_max_f32', m, tag + 'm%d' % q)
            for k in range(13):
                p('v_sub_f32 %s, %s, %s' % (v[k], v[k], m))
        order = [12] + list(range(12))
        for k in order:
            p('v_exp_f32 %s, %s' % (v[k], v[k]))
        p('v_add_f32 %s, %s, %s' % (sums[q], v[12], v[0]))
        for k in range(1, 12):
            p('v_add_f32 %s, %s, %s' % (sums[q], sums[q], v[k]))
        xred(p, 'v_add_f32', sums[q], tag + 's%d' % q)
        rc = V('rc%d' % q, 1)
        p('v_rcp_f32 %s, %s' % (rc, sums[q]))
        for k in range(6):
            p('v_mul_f32 %s, %s, %s' % (v[2 * k], v[2 * k], rc))
            p('v_mul_f32 %s, %s, %s' % (v[2 * k + 1], v[2 * k + 1], rc))
            p.l.append(cvt(PB[q][k >> 2][k & 3], v[2 * k], v[2 * k + 1]))
        p('v_mul_f32 %s, %s, %s' % (v[12], v[12], rc))
        p.l.append(cvt(PB[q][1][2], v[12], '0'))
        p('v_mov_b32 %s, 0' % PB[q][1][3])
        p.l[-1].after = [p.l[-2]]
        return p.l

    def check():
        p = Prog()
        hi, lo = V('hi', 1), V('lo', 1)
        p('v_max3_u32 %s, %s, %s, %s' % (hi, sums[0], sums[1], sums[2]))
        p('v_min3_u32 %s, %s, %s, %s' % (lo, sums[0], sums[1], sums[2]))
        p('v_cmp_lt_u32 vcc, 0x5f800000, %s' % hi)
        p('s_mov_b64 s[%d:%d], vcc' % (sBAD, sBAD + 1))
        p('v_cmp_gt_u32 vcc, 0x1f800000, %s' % lo)
        p('s_or_b64 s[%d:%d], s[%d:%d], vcc' % (sBAD, sBAD + 1, sBAD, sBAD + 1))
        return p.l

    def Y(q):
        out = []
        for s in range(3):
            acc = [V('ya%d_%d_%d' % (q, s, x)) for x in range(2)]
            for k in range(2):
                for x in range(2):
                    out.append(mf(acc[x], XT[2 * s + x][k], PB[q][k], k == 0))
            for r in range(4):
                out.append(cvt(YB[q][s][r], acc[0][r], acc[1][r]))
        return out

    def YLq():
        out = []
        ws = []
        for s in range(3):
            acc = [V('yl%d_%d' % (s, x)) for x in range(2)]
            for k in range(2):
                for x in range(2):
                    out.append(mf(acc[x], PB[3][k], XT[2 * s + x][k], k == 0))
            y = V('ylc%d' % s, 1)
            out.append(cvt(y, acc[0][0], acc[1][0]))
            out.append(Ins('ds_write_b32 %s, %s offset:%d' % (aYLw, y, YL - SCR + 64 * s)))
            ws.append(out[-1])
        one = V('one', 1)
        out.append(Ins('v_mov_b32 %s, 1' % one))
        out[-1].after = [ws[0]]
        out.append(Ins('ds_write_b32 %s, %s' % (aFw, one)))
        out[-1].after = ws
        return out

    def O(q):
        out = []
        OB = [V('ob%d_%d' % (q, r)) for r in range(4)]
        for jj in range(3):
            acc = [V('oa%d_%d_%d' % (q, jj, x)) for x in range(2)]
            for s in range(3):
                for x in range(2):
                    out.append(mf(acc[x], YB[q][s], W2[(2 * jj + x) * 3 + s], s == 0))
            for r in range(4):
                out.append(cvt(OB[r][jj], acc[0][r], acc[1][r]))
        for r in range(4):
            T0 = 16 * q + 4 * r
            row0 = T0 // 7
            thr = min(4, 7 * (row0 + 1) - T0)
            out.append(Ins('buffer_store_dwordx3 %s, %s, s[16:19], s%d offen offset:%d %s'
                           % (OB[r][0:3], vS[thr], sROW + row0, 192 * (T0 - 7 * row0), STFLAG)))
        return out

    L = (lambda f: f()) if withL else (lambda f: [])
    seq = reads()
    if ORDER == 'a':
        seq += T([0]) + Emf() + keyL() + L(Lq) + Smf(0) + soft(0) + T([1]) + Smf(1) + soft(1) + T([2]) + Smf(2) + soft(2)
        seq += Y(0) + L(YLq) + Y(1) + Y(2)
    elif ORDER == 'b':
        seq += T([0, 1]) + Emf() + keyL() + L(Lq) + Smf(0) + soft(0) + T([2]) + Smf(1) + soft(1) + Smf(2) + soft(2)
        seq += L(YLq) + Y(0) + Y(1) + Y(2)
    elif ORDER == 'c':
        seq += T([0, 1, 2]) + Emf() + keyL() + L(Lq) + Smf(0) + soft(0) + Smf(1) + soft(1) + Smf(2) + soft(2)
        seq += L(YLq) + Y(0) + Y(1) + Y(2)
    elif ORDER == 'd':
        seq += Emf() + keyL() + L(Lq) + T([0]) + Smf(0) + soft(0) + T([1]) + Smf(1) + soft(1) + T([2]) + Smf(2) + soft(2)
        seq += Y(0) + L(YLq) + Y(1) + Y(2)
    if fast:
        seq += check()
    nb = sum(1 for i in seq if i.kind == 'mfma')
    for q in range(3):
        o = O(q)
        nb += 18
        for i in o:
            if i.kind == 'vstore':
                i.deadline = 4 * nb + 16
        seq += o
    for i in seq:
        if i.kind == 'ds_write':
            i.deadline = 4 * (nb - 54)
    return seq, W2


def ltail(W2):
    p = Prog()
    YL2 = [VReg('yl2_%d' % s, 4) for s in range(3)]
    f = VReg('fl', 2)
    aFr, aYLr, vOL, t1, t2 = [VReg(n, 1) for n in 'aFr aYLr vOL t1 t2'.split()]
    p('v_add_u32 %s, -8, %s' % (aFr, aFw))
    p('s_mul_i32 s41, s28, %d' % SSTR)
    p('s_add_u32 s41, s41, %d' % YL)
    p('v_and_b32 %s, 48, v0' % t1)
    p('v_bfe_u32 %s, v0, 2, 2' % t2)
    p('v_min_u32 %s, 2, %s' % (t2, t2))
    p('v_mul_u32_u24 %s, %d, %s' % (t2, 4 * SSTR, t2))
    p('v_add3_u32 %s, %s, %s, s41' % (aYLr, t1, t2))
    p('L_poll2:')
    p('ds_read_b64 %s, %s' % (f, aFr))
    for s in range(3):
        p('ds_read_b128 %s, %s offset:%d' % (YL2[s], aYLr, 64 * s))
    p('s_mov_b32 s42, %d' % ((GENJ - 192) // 16))
    p('v_mul_lo_u32 %s, %s, s42' % (vOL, t1))
    p('v_add_u32 %s, %s, %s' % (vOL, vOL, vS[4]))
    p('s_add_u32 s43, s%d, %d' % (sBASE0, LOFF))
    p('s_waitcnt lgkmcnt(0)')
    p('v_and_b32 %s, %s, %s' % (f[0], f[0], f[1]))
    p('v_readfirstlane_b32 s40, %s' % f[0])
    p('s_cmp_eq_u32 s40, 0')
    p('s_cbranch_scc1 L_poll2')
    acc = [VReg('ola%d' % j, 4) for j in range(6)]
    ob = VReg('olb', 4)
    for s in range(3):
        for j in range(6):
            p.l.append(mf(acc[j], YL2[s], W2[3 * j + s], s == 0))
    for jj in range(3):
        p.l.append(cvt(ob[jj], acc[2 * jj][0], acc[2 * jj + 1][0]))
    p('buffer_store_dwordx3 %s, %s, s[16:19], s43 offen %s' % (ob[0:3], vOL, STFLAG))
    return p.l


def build():
    pro = prologue()
    seq, W2 = window(FAST, True, 'f')
    main, t = sched.schedule(seq, slack=SLACK, verbose=True)
    lt = ltail(W2)
    lblocks = set()
    for i in lt:
        lblocks |= blocks_of(i)
    live = {b for b in lblocks if b in PIN or b in W2}
    asg, peak = allocate(main, LO, HI, pre=dict(PIN), liveout=live)
    asgl, pl = allocate(lt, LO, HI, pre={b: asg[b] for b in live}, liveout=lblocks)
    print('peak regs', peak + 1, file=sys.stderr)
    body = pro + rewrite(main, asg)
    body += stamp()
    p = Prog()
    p('s_cmp_lt_u32 s3, 8')
    p('s_cbranch_scc1 L_noL')
    body += p.l + rewrite(lt, asgl)
    p = Prog()
    p('L_noL:')
    if FAST:
        if FORCESLOW:
            p('s_branch L_slow')
        else:
            p('s_cmp_lg_u64 s[%d:%d], 0' % (sBAD, sBAD + 1))
            p('s_cbranch_scc1 L_slow')
    p('L_fin:')
    body += p.l
    body += stamp()
    body += stamp_dump()
    body.append(Ins('s_endpgm'))
    if FAST:
        p = Prog()
        p('L_slow:')
        p('s_waitcnt vmcnt(0) lgkmcnt(0)')
        p('s_nop 7')
        main_addresses(p, 22)
        seq2, _ = window(False, False, 'g')
        slow, _ = sched.schedule(seq2, slack=SLACK)
        asg2, _ = allocate(slow, LO, HI, pre=dict(PIN))
        body += p.l + rewrite(slow, asg2) + [Ins('s_branch L_fin')]
    body = finalize(body)
    hdr = open(os.path.join(os.path.dirname(os.path.abspath(__file__)), 'header.txt')).read()
    s = hdr
    s += '; @launch grid=(%d,1,1) block=(768,1,1) lds=%d\n' % (NWG, LDS)
    s += '.amdgcn_target "amdgcn-amd-amdhsa--gfx950"\n.text\n.globl %s_kernel\n.p2align 8\n' % NAME
    s += '.type %s_kernel,@function\n%s_kernel:\n' % (NAME, NAME)
    s += render(body)
    s += 'L_end:\n    s_endpgm\n'
    s += '''.section .rodata,"a"
.p2align 6
.amdhsa_kernel %s_kernel
  .amdhsa_next_free_vgpr 168
  .amdhsa_next_free_sgpr 100
  .amdhsa_accum_offset 168
  .amdhsa_group_segment_fixed_size 0
  .amdhsa_kernarg_size 48
  .amdhsa_user_sgpr_count 2
  .amdhsa_user_sgpr_kernarg_segment_ptr 1
  .amdhsa_system_sgpr_workgroup_id_x 1
.end_amdhsa_kernel
''' % NAME
    print('main', stats(finalize(rewrite(main, asg))), 'nstamps', nstamp[0], file=sys.stderr)
    return s


if __name__ == '__main__':
    open(sys.argv[1], 'w').write(build())
```

```python
import re

REG_RE = re.compile(r'\b([vsa])(?:\[(\d+):(\d+)\]|(\d+)\b)')

TRANS = ('v_exp_f32', 'v_log_f32', 'v_rcp_f32', 'v_rsq_f32', 'v_sqrt_f32', 'v_sin_f32', 'v_cos_f32')


def regs_of(tok):
    out = []
    tok = tok.strip()
    if tok in ('vcc', 'exec', 'm0', 'scc'):
        return [(tok, 0)]
    if tok in ('vcc_lo', 'vcc_hi'):
        return [('vcc', 0)]
    if tok in ('exec_lo', 'exec_hi'):
        return [('exec', 0)]
    for m in REG_RE.finditer(tok):
        k = m.group(1)
        if m.group(4) is not None:
            out.append((k, int(m.group(4))))
        else:
            out.extend((k, i) for i in range(int(m.group(2)), int(m.group(3)) + 1))
    return out


def split_ops(s):
    ops, depth, cur = [], 0, ''
    for ch in s:
        if ch == '[':
            depth += 1
        if ch == ']':
            depth -= 1
        if ch == ',' and depth == 0:
            ops.append(cur.strip())
            cur = ''
        else:
            cur += ch
    if cur.strip():
        ops.append(cur.strip())
    return ops


class Ins:
    def __init__(self, text, tag=None):
        self.text = text.strip()
        self.tag = tag
        t = self.text.split(';')[0].strip()
        parts = t.split(None, 1)
        self.op = parts[0]
        rest = parts[1] if len(parts) > 1 else ''
        self.ops = split_ops(rest)
        op = self.op
        self.reads, self.writes = [], []
        self.kind = 'other'
        self.mfma_c = []
        self.mfma_ab = []
        o = self.ops
        if op.endswith(':'):
            self.kind = 'label'
        elif op.startswith('v_mfma'):
            self.kind = 'mfma'
            self.passes = 8 if '32x32x16' in op else 4
            self.writes = regs_of(o[0])
            self.mfma_ab = regs_of(o[1]) + regs_of(o[2])
            self.mfma_c = regs_of(o[3].split()[0])
            self.reads = self.mfma_ab + self.mfma_c + [('exec', 0)]
        elif op.startswith('v_'):
            base = op.replace('_e32', '').replace('_e64', '')
            self.kind = 'trans' if base in TRANS else 'valu'
            lastfix = [x.split()[0] if i == len(o) - 1 else x for i, x in enumerate(o)]
            if base.startswith('v_permlane') and 'swap' in base:
                self.writes = regs_of(lastfix[0]) + regs_of(lastfix[1])
                self.reads = list(self.writes)
                self.kind = 'permlane'
            elif base.startswith('v_cmp'):
                self.writes = regs_of(lastfix[0])
                for x in lastfix[1:]:
                    self.reads += regs_of(x)
            elif base in ('v_readfirstlane_b32', 'v_readlane_b32'):
                self.writes = regs_of(lastfix[0])
                for x in lastfix[1:]:
                    self.reads += regs_of(x)
                self.kind = 'readlane'
            else:
                self.writes = regs_of(lastfix[0])
                for x in lastfix[1:]:
                    self.reads += regs_of(x)
                if base in ('v_fmac_f32', 'v_dot2c_f32_bf16', 'v_pk_fmac_f16'):
                    self.reads += self.writes
                if base in ('v_add_co_u32', 'v_addc_co_u32'):
                    self.writes = self.writes + [('vcc', 0)]
                if base == 'v_cndmask_b32' and len(o) == 3:
                    self.reads.append(('vcc', 0))
                if 'dpp' in op or 'row_' in t or 'quad_perm' in t:
                    self.dpp = True
            self.reads.append(('exec', 0))
        elif op.startswith('ds_read'):
            self.kind = 'ds_read'
            self.writes = regs_of(o[0])
            self.reads = regs_of(o[1].split()[0]) + [('exec', 0)]
        elif op.startswith('ds_write') or op.startswith('ds_add'):
            self.kind = 'ds_write'
            for x in o:
                self.reads += regs_of(x.split()[0])
            self.reads.append(('exec', 0))
        elif op.startswith('ds_bpermute') or op.startswith('ds_swizzle'):
            self.kind = 'ds_read'
            self.writes = regs_of(o[0])
            for x in o[1:]:
                self.reads += regs_of(x.split()[0])
        elif op.startswith('buffer_load') or op.startswith('global_load'):
            islds = re.search(r'\blds\b', t) is not None or 'load_lds' in op
            if islds:
                self.kind = 'dma'
                for x in o:
                    self.reads += regs_of(x.split()[0])
                self.reads.append(('m0', 0))
            else:
                self.kind = 'vload'
                self.writes = regs_of(o[0])
                for x in o[1:]:
                    self.reads += regs_of(x.split()[0])
            self.reads.append(('exec', 0))
        elif op.startswith('buffer_store') or op.startswith('global_store') or op.startswith('buffer_atomic'):
            self.kind = 'vstore'
            for x in o:
                self.reads += regs_of(x.split()[0])
            self.store_data = regs_of(o[0]) if op.startswith('buffer') else regs_of(o[1])
            self.wide = ('x4' in op) or ('x3' in op)
            self.reads.append(('exec', 0))
        elif op.startswith('s_load') or op.startswith('s_memtime') or op.startswith('s_memrealtime'):
            self.kind = 'smem'
            self.writes = regs_of(o[0])
            for x in o[1:]:
                self.reads += regs_of(x.split()[0])
        elif op == 's_waitcnt':
            self.kind = 'waitcnt'
        elif op == 's_barrier':
            self.kind = 'barrier'
        elif op == 's_nop':
            self.kind = 'nop'
            self.n = int(o[0], 0) + 1
        elif op.startswith('s_cbranch') or op in ('s_branch', 's_call_b64', 's_setpc_b64'):
            self.kind = 'branch'
            if 'scc' in op:
                self.reads = [('scc', 0)]
        elif op in ('s_endpgm', 's_setprio', 's_sleep'):
            self.kind = 'other'
        elif op.startswith('s_cmp'):
            self.kind = 'salu'
            for x in o:
                self.reads += regs_of(x)
            self.writes = [('scc', 0)]
        elif op.startswith('s_'):
            self.kind = 'salu'
            self.writes = regs_of(o[0])
            for x in o[1:]:
                self.reads += regs_of(x)
            if op.startswith('s_cselect') or op.startswith('s_addc') or op.startswith('s_subb'):
                self.reads.append(('scc', 0))
            if not (op.startswith('s_mov') or op.startswith('s_cselect') or op.startswith('s_mul')
                    or op.startswith('s_getreg') or op.startswith('s_getpc') or op.startswith('s_bfm')):
                self.writes.append(('scc', 0))
        else:
            raise ValueError('unknown instruction ' + text)
        self.rset = set(self.reads)
        self.wset = set(self.writes)

    def is_valu(self):
        return self.kind in ('valu', 'trans', 'permlane', 'readlane')

    def states(self):
        if self.kind == 'nop':
            return self.n
        if self.kind == 'label':
            return 0
        return 1

    def __repr__(self):
        return self.text


def parse_wait(ins):
    vm = lg = None
    m = re.search(r'vmcnt\((\d+)\)', ins.text)
    if m:
        vm = int(m.group(1))
    m = re.search(r'lgkmcnt\((\d+)\)', ins.text)
    if m:
        lg = int(m.group(1))
    return vm, lg


def insert_waits(prog):
    out = []
    lg = []
    vm = []
    for ins in prog:
        if ins.kind == 'waitcnt':
            v, l = parse_wait(ins)
            if v is not None:
                vm = vm[len(vm) - v:] if v < len(vm) else vm
                if v == 0:
                    vm = []
            if l is not None:
                if any(x.kind == 'smem' for x in lg) and l != 0:
                    pass
                else:
                    lg = lg[len(lg) - l:] if l < len(lg) else lg
                    if l == 0:
                        lg = []
            out.append(ins)
            continue
        touch = ins.rset | ins.wset
        need_l = need_v = None
        for i, p in enumerate(lg):
            if p.wset & touch:
                n = len(lg) - 1 - i
                if p.kind == 'smem' or any(x.kind == 'smem' for x in lg):
                    n = 0
                need_l = n if need_l is None else min(need_l, n)
        for i, p in enumerate(vm):
            if p.wset & touch:
                n = len(vm) - 1 - i
                need_v = n if need_v is None else min(need_v, n)
        if need_l is not None or need_v is not None:
            s = 's_waitcnt'
            if need_v is not None:
                need_v = min(need_v, 63)
                s += ' vmcnt(%d)' % need_v
                vm = vm[len(vm) - need_v:] if need_v else []
            if need_l is not None:
                need_l = min(need_l, 15)
                s += ' lgkmcnt(%d)' % need_l
                lg = lg[len(lg) - need_l:] if need_l else []
            out.append(Ins(s))
        if ins.kind in ('ds_read', 'ds_write', 'smem'):
            lg.append(ins)
        if ins.kind in ('vload', 'vstore', 'dma'):
            vm.append(ins)
        out.append(ins)
    return out


def vreg(rs):
    return {r for r in rs if r[0] in ('v', 'a')}


def sreg(rs):
    return {r for r in rs if r[0] in ('s', 'vcc')}


def required_distance(p, c):
    need = 0
    pv = p.is_valu()
    if pv:
        pw = vreg(p.wset)
        ps = sreg(p.wset)
        if c.kind == 'mfma' and pw & vreg(c.rset):
            need = max(need, 2)
        if c.kind == 'permlane' and pw & vreg(c.rset):
            need = max(need, 2)
        if getattr(c, 'dpp', False) and pw & vreg(c.rset):
            need = max(need, 2)
        if c.kind == 'readlane' and pw & vreg(c.rset):
            need = max(need, 1)
        if p.kind == 'trans' and c.is_valu() and c.kind != 'trans' and pw & (vreg(c.rset) | vreg(c.wset)):
            need = max(need, 1)
        if ps:
            if c.is_valu() and ps & sreg(c.rset):
                need = max(need, 4 if c.kind == 'readlane' else 2)
            if c.kind in ('vload', 'vstore', 'dma') and ps & sreg(c.rset):
                need = max(need, 5)
            if c.kind in ('salu', 'smem', 'branch') and ps & sreg(c.rset):
                need = max(need, 2)
        if ('exec', 0) in p.wset:
            need = max(need, 5)
    if p.kind == 'mfma':
        d = vreg(p.wset)
        big = p.passes == 8
        if c.kind == 'mfma':
            cc = set(c.mfma_c)
            if d & set(c.mfma_ab):
                need = max(need, 12 if big else 8)
            if d & cc:
                if cc == d and c.passes == p.passes:
                    pass
                else:
                    need = max(need, 10 if big else 6)
            elif d & vreg(c.wset):
                need = max(need, 10 if big else 6)
        elif c.kind not in ('nop', 'label', 'waitcnt'):
            if d & (vreg(c.rset) | vreg(c.wset)):
                need = max(need, 12 if big else 8)
        if c.is_valu() and set(p.mfma_c) & vreg(c.wset):
            need = max(need, 7 if big else 3)
    if p.kind == 'vstore' and p.wide:
        if set(p.store_data) & vreg(c.wset):
            need = max(need, 2 if c.is_valu() else 1)
    if p.kind == 'salu' and ('m0', 0) in p.wset and c.kind == 'dma':
        need = max(need, 1)
    return need


def insert_nops(prog, window=24):
    out = []
    for ins in prog:
        dist = 0
        short = 0
        for p in reversed(out):
            if dist >= window:
                break
            r = required_distance(p, ins)
            if r > dist:
                short = max(short, r - dist)
            dist += p.states()
        while short > 0:
            k = min(short, 16)
            out.append(Ins('s_nop %d' % (k - 1)))
            short -= k
        out.append(ins)
    return out


class Prog:
    def __init__(self):
        self.l = []

    def __call__(self, text, tag=None):
        for line in text.strip().split('\n'):
            line = line.strip()
            if not line or line.startswith(';'):
                continue
            self.l.append(Ins(line, tag))
        return self

    def extend(self, other):
        self.l.extend(other.l if isinstance(other, Prog) else other)


def reset_lgkm():
    i = Ins('s_waitcnt lgkmcnt(0)')
    i.noemit = True
    return i


def finalize(prog_list):
    p = insert_waits(prog_list)
    p = [i for i in p if not getattr(i, 'noemit', False)]
    p = insert_nops(p)
    return p


def render(p):
    lines = []
    for i in p:
        if i.kind == 'label':
            lines.append(i.text)
        else:
            lines.append('    ' + i.text)
    return '\n'.join(lines) + '\n'


def merge(main, fill, ratio):
    out = []
    fi = 0
    credit = 0.0
    for m in main:
        out.append(m)
        if m.kind == 'mfma':
            credit += ratio
            while fi < len(fill) and credit > 0:
                f = fill[fi]
                out.append(f)
                credit -= 2.0 if f.kind == 'trans' else 1.0
                fi += 1
    out.extend(fill[fi:])
    return out


def stats(p):
    from collections import Counter
    c = Counter(i.kind for i in p)
    nopstates = sum(i.n for i in p if i.kind == 'nop')
    return dict(c), nopstates


VBASE = 1000


class VReg:
    _next = [VBASE]
    all = {}

    def __init__(self, name, n):
        self.name, self.n = name, n
        self.base = VReg._next[0]
        VReg._next[0] += n + (n & 1)
        for k in range(n):
            VReg.all[self.base + k] = self

    def __getitem__(self, k):
        if isinstance(k, slice):
            return 'v[%d:%d]' % (self.base + k.start, self.base + k.stop - 1)
        return 'v%d' % (self.base + k)

    def __str__(self):
        return 'v%d' % self.base if self.n == 1 else 'v[%d:%d]' % (self.base, self.base + self.n - 1)


def blocks_of(ins):
    s = set()
    for k, r in ins.rset | ins.wset:
        if k == 'v' and r >= VBASE:
            s.add(VReg.all[r])
    return s


def allocate(seq, lo, hi, pre=None, liveout=(), margin=6):
    first, last = {}, {}
    for i, ins in enumerate(seq):
        for b in blocks_of(ins):
            first.setdefault(b, i)
            e = i + (margin if ins.kind == 'mfma' else 0)
            last[b] = max(last.get(b, 0), e)
    assign = dict(pre or {})
    busy_until = {}
    freed_at = {}
    for b, ph in assign.items():
        if b in last:
            for k in range(b.n):
                busy_until[ph + k] = last[b]
    for b in liveout:
        last[b] = 10 ** 9
        if b in assign:
            for k in range(b.n):
                busy_until[assign[b] + k] = last[b]
    order = sorted((b for b in first if b not in assign), key=lambda b: (first[b], -b.n))
    peak = 0
    for b in order:
        t = first[b]
        best = None
        step = 1 if b.n == 1 else 2
        cands = []
        for ph in range(lo + (lo & 1 if step == 2 else 0), hi - b.n + 2, step):
            if all(busy_until.get(ph + k, -1) < t for k in range(b.n)):
                cands.append(ph)
        if not cands:
            live = sorted((x.name for x in assign if last.get(x, -1) >= t))
            raise RuntimeError('out of registers at %d (%s) for %s; live: %s' % (t, seq[t].text, b.name, live))
        if b.n == 1:
            def score(ph):
                q = ph & ~3
                nb = sum(1 for k in range(4) if busy_until.get(q + k, -1) >= t or q + k < lo or q + k > hi)
                return (-nb, -ph)
            best = min(cands, key=score)
        else:
            al = [c for c in cands if c % 4 == 0] or cands
            best = min(al, key=lambda ph: (max(busy_until.get(ph + k, -1) for k in range(b.n)), ph))
        assign[b] = best
        for k in range(b.n):
            busy_until[best + k] = last[b]
        peak = max(peak, sum(1 for r, u in busy_until.items() if u >= t))
    return assign, peak


def rewrite(seq, assign):
    def sub(m):
        if m.group(1) != 'v':
            return m.group(0)
        if m.group(4) is not None:
            r = int(m.group(4))
            if r < VBASE:
                return m.group(0)
            b = VReg.all[r]
            return 'v%d' % (assign[b] + r - b.base)
        a, z = int(m.group(2)), int(m.group(3))
        if a < VBASE:
            return m.group(0)
        b = VReg.all[a]
        return 'v[%d:%d]' % (assign[b] + a - b.base, assign[b] + z - b.base)
    return [Ins(REG_RE.sub(sub, i.text), i.tag) for i in seq]


def interleave(main, fill, per, start=0):
    out, fi, credit, nm = [], 0, 0.0, 0
    for m in main:
        out.append(m)
        if m.kind == 'mfma':
            nm += 1
            if nm > start:
                credit += per
                while fi < len(fill) and credit > 0:
                    f = fill[fi]
                    out.append(f)
                    credit -= 2.0 if f.kind == 'trans' else (1.0 if f.is_valu() else 0.5)
                    fi += 1
    out.extend(fill[fi:])
    return out
```

```python
from asmlib import *

EAGER = 24
LDS_LAT = 28


def cost(i):
    k = i.kind
    if k in ('trans', 'permlane'):
        return 2
    if k == 'ds_read':
        return 2
    if k == 'ds_write':
        return 6 if 'b128' in i.op else 3
    if k == 'vstore':
        return 5
    if k == 'branch':
        return 3
    return 1


def build_deps(seq):
    lastw, readers = {}, {}
    preds = [set() for _ in seq]
    idx = {id(x): n for n, x in enumerate(seq)}
    for n, i in enumerate(seq):
        for r in i.rset:
            if r == ('exec', 0):
                pass
            if r in lastw:
                preds[n].add(lastw[r])
        for r in i.wset:
            if r in lastw:
                preds[n].add(lastw[r])
            for q in readers.get(r, ()):
                if q != n:
                    preds[n].add(q)
        for r in i.rset:
            readers.setdefault(r, []).append(n)
        for r in i.wset:
            lastw[r] = n
            readers[r] = []
        for a in getattr(i, 'after', ()):
            if id(a) in idx:
                preds[n].add(idx[id(a)])
    return preds


def lat(p, c):
    if p.kind == 'ds_read' and p.wset & (c.rset | c.wset):
        return LDS_LAT
    d = required_distance(p, c)
    if p.kind == 'mfma' and c.kind == 'mfma' and d == 0:
        return 4
    return max(cost(p), d + 1)


def schedule(seq, slack=16, verbose=False, prefix=(), tail_deadline=None):
    n = len(seq)
    preds = build_deps(seq)
    succs = [[] for _ in seq]
    for c in range(n):
        for p in preds[c]:
            succs[p].append(c)
    backbone = [k for k in range(n) if seq[k].kind == 'mfma']
    pos = {k: j for j, k in enumerate(backbone)}
    end = 4 * len(backbone) + 12
    LS = [None] * n
    for k in reversed(range(n)):
        v = 4 * pos[k] if k in pos else getattr(seq[k], 'deadline', end)
        if seq[k].op.startswith('v_cvt_pk'):
            pm = [pos[q] for q in preds[k] if q in pos and seq[q].wset & seq[k].rset]
            if pm:
                v = min(v, 4 * max(pm) + EAGER)
        for s in succs[k]:
            v = min(v, LS[s] - lat(seq[k], seq[s]))
        LS[k] = v
    done = [False] * n
    npred = [len(p) for p in preds]
    out = list(prefix)
    nprefix = len(out)
    t = 0
    pipe_free = valu_free = 0
    issue_t = {}
    lgq = []
    bi = 0
    avail = {k for k in range(n) if npred[k] == 0}
    stalls = 0

    def hazard_short(i):
        dist, short = 0, 0
        for p in reversed(out[-24:]):
            r = required_distance(p, i)
            if r > dist:
                short = max(short, r - dist)
            dist += p.states()
        return short

    def unwaited(i):
        touch = i.rset | i.wset
        last = -1
        for j, (q, _) in enumerate(lgq):
            if seq[q].wset & touch:
                last = j
        return last

    def emit_wait(upto):
        nonlocal lgq, t
        j = upto
        while j + 1 < len(lgq) and lgq[j + 1][1] + LDS_LAT <= t:
            j += 1
        left = min(len(lgq) - 1 - j, 15)
        j = len(lgq) - 1 - left
        t = max(t + 1, lgq[upto][1] + LDS_LAT)
        out.append(Ins('s_waitcnt lgkmcnt(%d)' % left))
        lgq = lgq[j + 1:]

    def emit(k):
        nonlocal t, pipe_free, valu_free, bi
        i = seq[k]
        if i.kind == 'mfma':
            t = max(t, pipe_free)
            pipe_free = t + 4
            valu_free = t + 2
            bi += 1
        elif i.is_valu():
            t = max(t, valu_free)
        c = cost(i)
        if i.kind == 'ds_read' and out and out[-1].is_valu():
            c += 1
        issue_t[k] = t
        if i.kind in ('ds_read', 'ds_write'):
            lgq.append((k, t))
        t += c
        out.append(i)
        done[k] = True
        avail.discard(k)
        for s in succs[k]:
            npred[s] -= 1
            if npred[s] == 0:
                avail.add(s)

    def data_ready(k):
        u = unwaited(seq[k])
        return u < 0 or lgq[u][1] + LDS_LAT <= t

    def released(k):
        i = seq[k]
        clock = 4 * bi
        if i.kind == 'ds_read':
            return clock >= LS[k] - getattr(i, 'slack', slack) and len(lgq) < 15
        if getattr(i, 'late', False):
            return clock >= LS[k] - slack
        return clock >= getattr(i, 'release', -10 ** 9)

    while not all(done):
        nxt = backbone[bi] if bi < len(backbone) else None
        m_ok = nxt is not None and nxt in avail and hazard_short(seq[nxt]) == 0
        shadow = out and out[-1].kind == 'mfma'
        if shadow:
            did = False
            for look in backbone[bi:bi + 2]:
                u = unwaited(seq[look])
                if u >= 0 and lgq[u][1] + LDS_LAT <= t + 2:
                    emit_wait(u)
                    did = True
                    break
            if did:
                continue
        fill = [k for k in avail if seq[k].kind != 'mfma' and released(k) and hazard_short(seq[k]) == 0
                and data_ready(k)]
        fill.sort(key=lambda k: (LS[k], k))
        room = pipe_free - t
        if m_ok and unwaited(seq[nxt]) < 0 and room <= 0:
            emit(nxt)
            continue
        pick = None
        mready = m_ok and data_ready(nxt)
        for k in fill:
            i = seq[k]
            c = cost(i)
            start = max(t, valu_free) if i.is_valu() else t
            if i.kind == 'ds_read' and out and out[-1].is_valu():
                c += 1
            if unwaited(i) >= 0:
                c += 1
            if not mready or start + c <= pipe_free:
                pick = k
                break
            if shadow and c > 3 and LS[k] <= 4 * bi + 8:
                pick = k
                break
        if shadow and mready:
            for k in fill:
                i = seq[k]
                if not i.is_valu() and cost(i) <= 3 and unwaited(i) < 0:
                    pick = k
                    break
        if pick is not None:
            u = unwaited(seq[pick])
            if u >= 0:
                emit_wait(u)
            emit(pick)
            continue
        if m_ok:
            u = unwaited(seq[nxt])
            if u >= 0:
                emit_wait(u)
            emit(nxt)
            continue
        cand = [k for k in avail if seq[k].kind != 'mfma' or k == nxt]
        cand.sort(key=lambda k: (LS[k], k))
        prog = False
        for k in cand:
            if hazard_short(seq[k]) == 0 and (seq[k].kind != 'ds_read' or len(lgq) < 15) and data_ready(k):
                u = unwaited(seq[k])
                if u >= 0:
                    emit_wait(u)
                emit(k)
                prog = True
                break
        if prog:
            continue
        hz = [k for k in cand if hazard_short(seq[k]) > 0 and data_ready(k)]
        if hz:
            out.append(Ins('s_nop 0'))
            t += 1
            stalls += 1
            continue
        k = cand[0]
        u = unwaited(seq[k])
        if u < 0:
            u = 0
        emit_wait(u)
    res = []
    for i in out[nprefix:]:
        if i.kind == 'nop' and res and res[-1].kind == 'nop' and res[-1].n + i.n <= 16:
            res[-1] = Ins('s_nop %d' % (res[-1].n + i.n - 1))
        else:
            res.append(i)
    if verbose:
        print('schedule: %d slots (%d cycles), %d mfma, nop states %d' % (t, 4 * t, len(backbone), stalls),
              file=__import__('sys').stderr)
    return res, t
```

```python
import sys, struct, math, os
sys.path.insert(0, os.path.dirname(os.path.abspath(__file__)))
from asmlib import *
import sched

NAME = 'standalone__swin_window_attn__vision'
XBYTES = 27433728
NWG = 243
MT, WV = 0, 18432
WVJ = 3072 + 48
XBUF0, XSTR = 37248, 9216
RAWM = XBUF0 + 4 * XSTR
RAWV = XBUF0 + 8 * XSTR
RAWO = RAWV + 18432
SCR = XBUF0 + 12 * XSTR
SSTR = 720
UT, YL, PS = SCR, SCR + 384, SCR + 576
XLT = SCR + 12 * SSTR
FLG = XLT + 2304
LDS = FLG + 128
ROWS = 72576
ROWJ = ROWS - 1344
GENJ = 18 * 508032
LOFF = 6 * ROWS + 6 * 192

opts = dict(a.split('=', 1) for a in sys.argv[2:] if '=' in a)
LDFLAG = opts.get('ld', '').replace('+', ' ')
STFLAG = opts.get('st', 'sc1').replace('+', ' ')
STAMP = int(opts.get('stamp', '0'))
AMP = int(opts.get('amp', '-1'))
AMPGEN = int(opts.get('ampgen', '-1'))
FAST = int(opts.get('fast', '1'))
FORCESLOW = int(opts.get('forceslow', '0'))
LONE = int(opts.get('lone', '0'))
SLACK = int(opts.get('slack', '16'))
ORDER = opts.get('order', 'd')
PREFETCH = int(opts.get('pf', '0'))
XSPLIT = int(opts.get('xsplit', '9'))
FWPRIO = int(opts.get('fwprio', '3'))
PRIO0 = int(opts.get('prio0', '0'))
NH = int(opts.get('nh', '8'))
XLTLATE = int(opts.get('xltlate', '0'))
PRE = int(opts.get('pre', '18'))
PSLEEP = int(opts.get('psleep', '0'))
P_L1 = int(opts.get('pl1', '3'))
P_FW = int(opts.get('pfw', '0'))
P_FM = int(opts.get('pfm', '3'))
sched.LDS_LAT = int(opts.get('ldslat', '28'))
sched.EAGER = int(opts.get('eager', '24'))

cscale = (96.0 ** -0.5) * math.log2(math.e)
CS_HEX = '0x%08x' % struct.unpack('<I', struct.pack('<f', cscale))[0]
for idx in range(2916):
    assert (idx * 1214) >> 16 == idx // 54
for e in range(96):
    assert (e * 43) >> 8 == e // 6

MF16 = 'v_mfma_f32_16x16x32_bf16'

PIN = {}


def pin(name, r):
    v = VReg(name, 1)
    PIN[v] = r
    v.ph = r
    return v


aW, aT0, aT1, aT3, aYLw, aFw, aPSr, aX, aX3, aE, aPSw, vNINF = [
    pin(n, k + 5) for k, n in enumerate('aW aT0 aT1 aT3 aYLw aFw aPSr aX aX3 aE aPSw vNINF'.split())]
vS = {k: pin('vS%d' % k, k) for k in (1, 2, 3, 4)}
LO, HI = 1, 167
L16 = 19
XOFF = 152
XL = 140
sBUF, sBASE0 = 60, 61
sROW = 30
sG0, sG1, sG2, sL48, sBAD = 50, 52, 54, 56, 58

nstamp = [0]
GATE = []


def vr(b, n=4):
    return 'v[%d:%d]' % (b, b + n - 1)


def stamp(real=False):
    if not STAMP and AMP < 0:
        return []
    k = nstamp[0]
    nstamp[0] += 1
    p = Prog()
    if AMP >= 0:
        if k == 0 or k == AMP:
            p('s_memrealtime s[%d:%d]' % ((64, 65) if k == 0 else (68, 69)))
            p('s_waitcnt lgkmcnt(0)')
        return p.l
    p('%s s[%d:%d]' % ('s_memrealtime' if real else 's_memtime', 64 + 2 * k, 65 + 2 * k))
    p('s_waitcnt lgkmcnt(0)')
    return p.l


def fstamp(p, k):
    if STAMP != 2:
        return
    p('s_memtime s[%d:%d]' % (88 + 2 * k, 89 + 2 * k))
    p('s_waitcnt lgkmcnt(0)')


def stamp_dump():
    p = Prog()
    if AMP >= 0:
        p('s_waitcnt vmcnt(0)')
        p.extend(stamp())
        p('s_sub_u32 s68, s68, s64')
        p('s_mul_i32 s68, s68, 10')
        if AMPGEN >= 0:
            p('s_cmp_eq_u32 s29, %d' % AMPGEN)
            p('s_cselect_b32 s68, s68, 0')
        p('s_add_u32 s68, s68, 4000')
        p('s_min_u32 s68, s68, 40000')
        p('L_spin:')
        p('s_memrealtime s[66:67]')
        p('s_waitcnt lgkmcnt(0)')
        p('s_sub_u32 s66, s66, s64')
        p('s_cmp_lt_u32 s66, s68')
        p('s_cbranch_scc1 L_spin')
        return p.l
    if not STAMP:
        return []
    p('s_waitcnt vmcnt(0)')
    p.extend(stamp())
    p.extend(stamp(True))
    p('s_load_dwordx2 s[4:5], s[0:1], 40')
    p('s_mul_i32 s6, s2, 12')
    p('s_add_u32 s6, s6, s3')
    p('s_lshl_b32 s8, s6, 7')
    p('s_mov_b32 s6, 0x1000000')
    p('s_mov_b32 s7, 0x20000')
    p('s_getreg_b32 s9, hwreg(HW_REG_HW_ID)')
    p('s_getreg_b32 s10, hwreg(HW_REG_XCC_ID)')
    p('s_waitcnt lgkmcnt(0)')
    p('s_mov_b64 exec, 1')
    p('v_mov_b32 v1, 0')
    for k in range(nstamp[0]):
        p('v_mov_b32 v2, s%d' % (64 + 2 * k))
        p('buffer_store_dword v2, v1, s[4:7], s8 offen offset:%d' % (4 * k))
    if STAMP == 2:
        for k in range(6):
            p('v_mov_b32 v2, s%d' % (88 + 2 * k))
            p('buffer_store_dword v2, v1, s[4:7], s8 offen offset:%d' % (64 + 4 * k))
    p('v_mov_b32 v2, s9')
    p('buffer_store_dword v2, v1, s[4:7], s8 offen offset:120')
    p('v_mov_b32 v2, s10')
    p('buffer_store_dword v2, v1, s[4:7], s8 offen offset:124')
    return p.l


def x_dma(p, lo=0, hi=9):
    for n in range(lo, hi):
        r0 = (64 * n) // 84
        if n % 4 == 0 or n == lo:
            p('s_add_u32 s40, s%d, %d' % (sBUF, 1024 * (n & ~3)))
            p('s_mov_b32 m0, s40')
        p('s_add_u32 s41, s%d, %d' % (sROW, 1024 * (n & ~3) + ROWJ * r0))
        p('buffer_load_dwordx4 v%d, s[12:15], s41 offen offset:%d %s lds' % (XOFF + n, 1024 * (n & 3), LDFLAG))


def win_base(p):
    p('s_mov_b32 s14, %d' % XBYTES)
    p('s_mov_b32 s15, 0x20000')
    p('s_lshl_b32 s40, s2, 2')
    p('s_add_u32 s40, s40, s28')
    p('s_mul_i32 s41, s40, 1214')
    p('s_lshr_b32 s41, s41, 16')
    p('s_mul_i32 s41, s41, 435456')
    p('s_mul_i32 s40, s40, 1344')
    p('s_add_u32 s%d, s40, s41' % sBASE0)
    p('s_mul_i32 s40, s29, %d' % GENJ)
    p('s_add_u32 s%d, s40, s%d' % (sROW, sBASE0))
    p('s_add_u32 s%d, s%d, %d' % (sBASE0, sBASE0, LOFF))
    p('s_mul_i32 s%d, s3, %d' % (sBUF, XSTR))
    p('s_add_u32 s%d, s%d, %d' % (sBUF, sBUF, XBUF0))


def count(p, off, t):
    p('v_mov_b32 v%d, %d' % (t, FLG))
    p('v_mov_b32 v%d, 1' % (t + 1))
    p('s_mov_b64 exec, 1')
    p('ds_add_u32 v%d, v%d offset:%d' % (t, t + 1, off))
    p('s_mov_b64 exec, -1')


def poll(p, off, target, label, t):
    p('v_mov_b32 v%d, %d' % (t, FLG))
    p('%s:' % label)
    if PSLEEP:
        p('s_sleep %d' % PSLEEP)
    p('ds_read_b32 v%d, v%d offset:%d' % (t + 1, t, off))
    p('s_waitcnt lgkmcnt(0)')
    p('v_readfirstlane_b32 s40, v%d' % (t + 1))
    p('s_cmp_lt_u32 s40, %d' % target)
    p('s_cbranch_scc1 %s' % label)


def img_addr(p, d, t):
    p('v_lshrrev_b32 v%d, 2, v0' % t)
    p('v_bitop3_b32 v%d, v%d, 8, v0 bitop3:0x6a' % (t, t))
    p('v_lshlrev_b32 v%d, 4, v%d' % (d, t))


def x_offsets(p, t):
    sw = [XOFF, XOFF + 4, XOFF + 8]
    p('v_lshrrev_b32 v%d, 4, v0' % t)
    p('v_mul_u32_u24 v%d, 43, v%d' % (t, t))
    p('s_mov_b32 s41, 0x30')
    for m in range(3):
        if m:
            p('v_add_u32 v%d, %d, v%d' % (t + 1, 4 * m * 43, t))
            p('v_lshrrev_b32 v%d, 3, v%d' % (t + 1, t + 1))
        else:
            p('v_lshrrev_b32 v%d, 3, v%d' % (t + 1, t))
        p('v_bitop3_b32 v%d, v%d, s41, v%d bitop3:0x6a' % (sw[m], t + 1, L16))
        p('v_add_u32 v%d, 0x%x, v%d' % (t + 2 + m, ROWJ, sw[m]))
    for n in range(9):
        r0 = (64 * n) // 84
        thr = 84 * (r0 + 1) - 64 * n
        if thr >= 64:
            assert XOFF + n == sw[n % 3]
        else:
            p('s_lshl_b64 s[42:43], -1, %d' % thr)
            p('v_cndmask_b32 v%d, v%d, v%d, s[42:43]' % (XOFF + n, sw[n % 3], t + 2 + n % 3))


def main_addresses(p, t):
    i, g, a, b, c = t, t + 1, t + 2, t + 3, t + 4
    p('v_and_b32 v%d, 15, v0' % i)
    p('v_lshrrev_b32 v%d, 4, v0' % g)
    img_addr(p, aW.ph, a)
    p('s_movk_i32 s40, 192')
    p('v_and_b32 v%d, 3, v0' % a)
    p('v_bfe_u32 v%d, v0, 2, 2' % b)
    p('v_lshl_add_u32 v%d, v%d, 2, v%d' % (c, a, b))
    p('v_xor_b32 v%d, v%d, v%d' % (aX.ph, g, a))
    p('v_lshl_add_u32 v%d, v%d, 4, s%d' % (aX.ph, aX.ph, sBUF))
    p('v_mad_u32_u24 v%d, v%d, s40, v%d' % (aX.ph, c, aX.ph))
    p('s_mul_i32 s41, s28, 576')
    p('s_mul_i32 s42, s29, 192')
    p('s_add_u32 s41, s41, s42')
    p('s_add_u32 s41, s41, %d' % XLT)
    p('v_lshl_add_u32 v%d, v%d, 4, s41' % (aX3.ph, g))
    p('v_lshl_add_u32 v%d, v%d, 3, s41' % (aT3.ph, a))
    p('v_lshlrev_b32 v%d, 1, v%d' % (c, b))
    p('v_xor_b32 v%d, v%d, v%d' % (c, c, a))
    p('v_lshl_add_u32 v%d, v%d, 3, s%d' % (aT0.ph, c, sBUF))
    p('v_lshl_add_u32 v%d, v%d, 2, v%d' % (c, b, g))
    p('v_mad_u32_u24 v%d, v%d, s40, v%d' % (aT0.ph, c, aT0.ph))
    p('v_xor_b32 v%d, 32, v%d' % (aT1.ph, aT0.ph))
    p('s_mul_i32 s41, s3, %d' % SSTR)
    p('s_add_u32 s41, s41, %d' % SCR)
    p('v_lshl_add_u32 v%d, v%d, 4, s41' % (aE.ph, g))
    p('v_and_b32 v%d, 1, v0' % c)
    p('v_mad_u32_u24 v%d, v%d, s40, v%d' % (aE.ph, c, aE.ph))
    p('v_lshl_add_u32 v%d, v0, 1, s41' % aPSw.ph)
    p('v_lshl_add_u32 v%d, v%d, 3, s41' % (aPSr.ph, g))
    p('v_lshl_add_u32 v%d, v%d, 2, s41' % (aYLw.ph, i))
    p('s_lshl_b32 s41, s28, 4')
    p('s_lshl_b32 s42, s29, 2')
    p('s_add_u32 s41, s41, s42')
    p('s_add_u32 s41, s41, %d' % (FLG + 16))
    p('v_mov_b32 v%d, s41' % aFw.ph)
    p('v_mov_b32 v%d, 0xff800000' % vNINF.ph)
    p('v_mul_u32_u24 v%d, 12, v%d' % (c, i))
    p('v_mad_u32_u24 v%d, v%d, s40, v%d' % (vS[4].ph, g, c))
    p('v_add_u32 v%d, 0x%x, v%d' % (c, ROWJ, vS[4].ph))
    for thr in (1, 2, 3):
        p('s_lshl_b64 s[42:43], -1, %d' % (16 * thr))
        p('v_cndmask_b32 v%d, v%d, v%d, s[42:43]' % (vS[thr].ph, vS[4].ph, c))
    for k in range(1, 7):
        p('s_add_u32 s%d, s%d, %d' % (sROW + k, sROW, ROWS * k))
    p('s_mov_b32 s16, s10')
    p('s_mov_b32 s17, s11')
    p('s_mov_b32 s18, %d' % XBYTES)
    p('s_mov_b32 s19, 0x20000')
    p('s_mov_b64 s[%d:%d], 0xffff' % (sG0, sG0 + 1))
    p('s_lshl_b64 s[%d:%d], s[%d:%d], 16' % (sG1, sG1 + 1, sG0, sG0 + 1))
    p('s_lshl_b64 s[%d:%d], s[%d:%d], 32' % (sG2, sG2 + 1, sG0, sG0 + 1))
    p('s_lshl_b64 s[%d:%d], 1, 48' % (sL48, sL48 + 1))


def fold_body(rdA, rdB, post, tag):
    A = [[VReg('%sa%d%d' % (tag, a, k), 4) for k in range(3)] for a in range(3)]
    B = [[VReg('%sb%d%d' % (tag, a, k), 4) for k in range(3)] for a in range(3)]
    seq = []
    for kind, a in (('A', 0), ('B', 0), ('B', 1), ('A', 1), ('B', 2), ('A', 2)):
        for ks in range(3):
            seq += rdA(a, ks, A[a][ks]) if kind == 'A' else rdB(a, ks, B[a][ks])
    for i in seq:
        i.slack = 1000
    nb = 0
    for a, t in ((0, 0), (0, 1), (1, 0), (1, 1), (0, 2), (1, 2), (2, 0), (2, 1), (2, 2)):
        acc = VReg('%sd%d%d' % (tag, a, t), 4)
        for ks in range(3):
            seq.append(mf(acc, A[a][ks], B[t][ks], ks == 0))
        nb += 3
        l = post(a, t, acc)
        l[-1].deadline = 4 * nb + 24
        seq += l
    save = sched.LDS_LAT
    sched.LDS_LAT = 24
    out, t = sched.schedule(seq, verbose=True)
    sched.LDS_LAT = save
    asg, _ = allocate(out, 28, 127)
    return rewrite(out, asg)


def prologue():
    p = Prog()
    W = L16
    p('L_start:')
    p.extend(stamp(True))
    p.extend(stamp())
    p('s_load_dwordx4 s[4:7], s[0:1], 0')
    p('s_load_dwordx4 s[8:11], s[0:1], 16')
    p('s_sub_u32 s2, s2, %d' % NH)
    p('s_cmp_ge_u32 s2, %d' % NWG)
    p('s_cbranch_scc1 L_help')
    p('v_lshrrev_b32 v20, 6, v0')
    p('v_readfirstlane_b32 s3, v20')
    p('v_and_b32 v0, 63, v0')
    p('v_lshlrev_b32 v%d, 4, v0' % W)
    p('s_and_b32 s28, s3, 3')
    p('s_lshr_b32 s29, s3, 2')
    p('s_cmp_eq_u32 s29, 0')
    p('s_cbranch_scc1 L_gen0')
    p('s_cmp_eq_u32 s29, 2')
    p('s_cbranch_scc1 L_gen2')
    k0 = nstamp[0]
    p('s_setprio 3')
    p('v_lshrrev_b32 v22, 3, v0')
    p('v_mul_u32_u24 v22, 43, v22')
    p('s_lshl_b32 s40, s28, 5')
    p('s_and_b32 s40, s40, 32')
    p('v_xor_b32 v23, s40, v%d' % W)
    p('s_movk_i32 s41, 64')
    p('s_movk_i32 s42, 192')
    for m in range(3):
        if m:
            p('v_add_u32 v22, 344, v22')
        p('v_lshrrev_b32 v27, 2, v22')
        p('v_lshrrev_b32 v28, 7, v22')
        p('v_bitop3_b32 v27, v27, s41, v23 bitop3:0x6a')
        p('v_mad_u32_u24 v%d, v28, s42, v27' % (24 + m))
    p('s_mov_b32 s22, 55296')
    p('s_mov_b32 s23, 0x20000')
    p('s_mul_i32 s43, s28, 4608')
    p('s_mul_i32 s44, s28, 3072')
    p('s_add_u32 s44, s44, %d' % RAWM)
    p('s_mov_b32 m0, s44')
    p('s_waitcnt lgkmcnt(0)')
    p('s_mov_b32 s20, s6')
    p('s_mov_b32 s21, s7')
    for G in range(3):
        if G:
            p('s_add_u32 s44, s44, 12288')
            p('s_mov_b32 m0, s44')
            p('s_add_u32 s43, s43, 18432')
        for m in range(3):
            p('buffer_load_dwordx4 v%d, s[20:23], s43 offen offset:%d lds' % (24 + m, 1024 * m))
    p('s_branch L_gen1b')
    p('L_help:')
    p('s_cmp_lt_u32 s2, %d' % (0x100000000 - NH) if NH else 's_cmp_eq_u32 s2, s2')
    p('s_cbranch_scc1 L_end')
    if NH:
        p('s_getpc_b64 s[44:45]')
        p('L_pch:')
        p('s_sub_u32 s44, s44, L_pch-L_start')
        p('s_subb_u32 s45, s45, 0')
        p('v_lshlrev_b32 v1, 7, v0')
        p('v_min_u32 v24, L_fin-L_start, v1')
        p('v_mov_b32 v25, s45')
        p('v_add_co_u32 v24, vcc, s44, v24')
        p('v_addc_co_u32 v25, vcc, 0, v25, vcc')
        p('global_load_dword v26, v[24:25], off')
        p('s_mov_b32 s22, 55296')
        p('s_mov_b32 s23, 0x20000')
        p('s_movk_i32 s26, 18432')
        p('s_mov_b32 s27, 0x20000')
        p('v_subrev_u32 v2, %d, v1' % (448 * 128))
        p('s_waitcnt lgkmcnt(0)')
        p('s_mov_b32 s20, s6')
        p('s_mov_b32 s21, s7')
        p('s_mov_b32 s24, s8')
        p('s_mov_b32 s25, s9')
        p('buffer_load_dword v27, v1, s[20:23], 0 offen')
        p('buffer_load_dword v28, v2, s[24:27], 0 offen')
        p('s_endpgm')
    p('L_gen2:')
    fstamp(p, 0)
    p('s_barrier')
    p('v_lshrrev_b32 v22, 2, v0')
    p('v_mul_u32_u24 v22, 43, v22')
    p('s_and_b32 s48, s28, 1')
    p('s_lshl_b32 s43, s48, 1')
    p('s_movk_i32 s42, 192')
    p('s_movk_i32 s26, 18432')
    p('s_movk_i32 s47, 3072')
    p('s_cmp_lt_u32 s28, 2')
    p('s_cselect_b32 s42, 576, s42')
    p('s_cselect_b32 s43, s43, 0')
    p('s_cselect_b32 s26, 55296, s26')
    p('s_cselect_b32 s47, 9216, s47')
    p('s_cselect_b32 s39, 384, 0')
    p('s_mov_b32 s27, 0x20000')
    p('s_movk_i32 s41, 32')
    for m in range(3):
        if m:
            p('v_add_u32 v22, 688, v22')
        p('v_lshrrev_b32 v27, 5, v22')
        p('v_lshrrev_b32 v28, 7, v22')
        p('v_bitop3_b32 v27, v27, s41, v%d bitop3:0x6a' % W)
        p('v_xor_b32 v29, s43, v28')
        p('v_mad_u32_u24 v27, v29, s42, v27')
        p('v_mul_u32_u24 v28, 0xc0, v28')
        p('v_sub_u32 v%d, v27, v28' % (140 + m))
    p('s_mul_i32 s40, s48, s47')
    p('s_add_u32 s39, s39, s40')
    p('s_lshl_b32 s37, s47, 1')
    p('s_lshr_b32 s38, s28, 1')
    p('s_mul_i32 s38, s38, 18432')
    p('s_mul_i32 s40, s48, 3072')
    p('s_add_u32 s38, s38, s40')
    p('s_add_u32 s38, s38, %d' % RAWV)
    p('v_and_b32 v20, 15, v0')
    p('v_lshrrev_b32 v21, 4, v0')
    p('v_and_b32 v25, 3, v0')
    p('s_and_b32 s44, s28, 1')
    p('s_lshr_b32 s45, s28, 1')
    p('s_lshl_b32 s41, s44, 3')
    FAa, FBa, FDW = 132, 133, 134
    p('v_and_b32 v22, 1, v0')
    p('v_xor_b32 v24, s44, v22')
    p('v_lshlrev_b32 v22, 4, v22')
    p('v_lshl_add_u32 v22, v24, 1, v22')
    p('v_and_b32 v23, 12, v0')
    p('v_bfe_u32 v24, v0, 1, 1')
    p('v_add3_u32 v22, v22, v23, v24')
    p('v_bfe_u32 v23, v0, 3, 1')
    p('v_lshlrev_b32 v23, 1, v23')
    p('v_xor_b32 v23, v23, v21')
    p('s_mov_b32 s46, %d' % RAWV)
    p('v_lshl_add_u32 v23, v23, 4, s46')
    p('s_movk_i32 s40, 192')
    p('v_mad_u32_u24 v%d, v22, s40, v23' % FAa)
    p('v_bfe_u32 v22, v0, 2, 2')
    p('v_lshl_add_u32 v22, v21, 3, v22')
    p('v_xor_b32 v23, s45, v21')
    p('v_and_b32 v23, 1, v23')
    p('v_lshlrev_b32 v23, 5, v23')
    p('v_mad_u32_u24 v22, v22, s40, v23')
    p('v_lshl_add_u32 v22, v25, 3, v22')
    p('v_add_u32 v%d, %d, v22' % (FBa, RAWO))
    p('s_lshl_b32 s46, s45, 4')
    p('s_add_u32 s47, s41, %d' % WV)
    p('v_lshl_add_u32 v24, v21, 8, s47')
    p('s_movk_i32 s41, %d' % WVJ)
    p('v_lshrrev_b32 v26, 2, v0')
    p('v_and_b32 v26, 8, v26')
    for t in range(3):
        p('v_add_u32 v22, s46, v20')
        p('v_mul_u32_u24 v23, 43, v22')
        p('v_lshrrev_b32 v23, 8, v23')
        p('v_mad_u32_u24 v22, v22, s41, v24')
        p('v_xor_b32 v27, v26, v23')
        p('v_lshl_add_u32 v22, v27, 4, v22')
        p('v_mul_u32_u24 v23, %d, v23' % (6 * WVJ))
        p('v_sub_u32 v%d, v22, v23' % (FDW + t))
        if t < 2:
            p('s_add_u32 s46, s46, 32')
    p('s_branch L_gen2b')
    p('L_gen0:')
    p('s_setprio 3')
    if PREFETCH:
        p('s_getpc_b64 s[44:45]')
        p('L_pc:')
        p('s_sub_u32 s44, s44, L_pc-L_start')
        p('s_subb_u32 s45, s45, 0')
        p('s_mul_i32 s40, s28, 24')
        p('v_add_u32 v24, s40, v0')
        p('v_lshlrev_b32 v24, 7, v24')
        p('v_min_u32 v24, L_fin-L_start, v24')
        p('v_mov_b32 v25, s45')
        p('v_add_co_u32 v24, vcc, s44, v24')
        p('v_addc_co_u32 v25, vcc, 0, v25, vcc')
        p('s_bfm_b64 exec, 24, 0')
        p('global_load_dword v144, v[24:25], off')
        p('s_mov_b64 exec, -1')
    win_base(p)
    p('v_lshrrev_b32 v22, 2, v0')
    p('v_mul_u32_u24 v22, 43, v22')
    p('v_lshrrev_b32 v22, 7, v22')
    p('s_mov_b32 s41, %d' % (GENJ - 192))
    p('v_mad_u32_u24 v145, v22, s41, v%d' % W)
    p('s_mul_i32 s40, s28, 576')
    p('s_add_u32 s40, s40, %d' % XLT)
    p('s_mov_b32 m0, s40')
    p('s_waitcnt lgkmcnt(0)')
    p('s_mov_b32 s12, s4')
    p('s_mov_b32 s13, s5')
    def xlt_load():
        p('s_bfm_b64 exec, 36, 0')
        p('buffer_load_dwordx4 v145, s[12:15], s%d offen lds' % sBASE0)
        p('s_mov_b64 exec, -1')
    if not XLTLATE:
        xlt_load()
    p('s_setprio 0')
    p('v_and_b32 v23, 31, v0')
    p('v_lshlrev_b32 v23, 2, v23')
    p('v_add_u32 v23, %d, v23' % FLG)
    p('v_mov_b32 v22, 0')
    p('ds_write_b32 v23, v22')
    x_offsets(p, 22)
    p('v_and_b32 v20, 15, v0')
    p('v_lshrrev_b32 v21, 4, v0')
    p('v_min_u32 v24, 11, v20')
    p('v_and_b32 v26, 48, v0')
    p('v_and_b32 v22, 3, v24')
    p('v_mul_u32_u24 v22, 576, v22')
    p('v_lshrrev_b32 v23, 2, v24')
    p('v_mul_u32_u24 v23, 0xc0, v23')
    p('v_add3_u32 v22, v22, v23, v26')
    p('v_add_u32 v128, %d, v22' % XLT)
    p('s_and_b32 s44, s28, 1')
    p('s_lshr_b32 s45, s28, 1')
    p('s_lshl_b32 s41, s44, 3')
    p('s_mul_i32 s40, s44, 3072')
    img_addr(p, 22, 22)
    p('v_add_u32 v129, s40, v22')
    p('v_and_b32 v25, 3, v0')
    p('v_lshlrev_b32 v22, 8, v25')
    p('v_lshrrev_b32 v23, 2, v0')
    p('v_lshlrev_b32 v27, 2, v0')
    p('v_bitop3_b32 v23, v27, 8, v23 bitop3:0x6a')
    p('v_lshl_add_u32 v22, v23, 4, v22')
    p('v_add_u32 v131, s41, v22')
    p('s_cmp_eq_u32 s45, 0')
    p('s_cselect_b32 s42, 192, 0')
    p('s_add_u32 s42, s42, s41')
    p('s_add_u32 s42, s42, %d' % UT)
    p('v_mul_u32_u24 v24, %d, v24' % SSTR)
    p('v_add3_u32 v130, v24, v26, s42')
    p('s_setprio 2')
    p('s_waitcnt lgkmcnt(0)')
    fstamp(p, 0)
    p('s_barrier')
    fstamp(p, 1)
    if XLTLATE:
        xlt_load()
    x_dma(p, 0, XSPLIT)
    if not XLTLATE:
        p('s_waitcnt vmcnt(%d)' % XSPLIT)
    p.extend(stamp())
    p('s_barrier')
    p.extend(stamp())
    x_dma(p, XSPLIT, 9)
    p('s_setprio 0')
    main_addresses(p, 22)
    p('s_setprio %d' % P_L1)
    p.extend(stamp())
    if XLTLATE:
        p('s_waitcnt vmcnt(9)')
        count(p, 12, 22)
        poll(p, 12, 4, 'L_pollX0', 22)
    poll(p, 4, 4, 'L_pollM0', 22)
    p.extend(stamp())
    LA, LD, XL = 36, 72, 84
    for s in range(3):
        p('ds_read_b128 %s, v128 offset:%d' % (vr(XL + 4 * s), 64 * s))
    p('s_cmp_lg_u32 s45, 0')
    p('s_cbranch_scc1 L_L1u')
    for s in range(3):
        for t in range(3):
            p('ds_read_b128 %s, v129 offset:%d' % (vr(LA + 12 * t + 4 * s), 6144 * t + 1024 * s))
    p('s_branch L_L1c')
    p('L_L1u:')
    p.l.append(reset_lgkm())
    for s in range(3):
        for t in range(3):
            for x in range(2):
                p('ds_read_b64_tr_b16 %s, v131 offset:%d' % (vr(LA + 12 * t + 4 * s + 2 * x, 2),
                                                             6144 * s + 3072 * x + 1024 * t))
    p('L_L1c:')
    p('v_mov_b32 v22, %d' % FLG)
    p('v_mov_b32 v23, 1')
    for s in range(3):
        p('s_waitcnt lgkmcnt(%d)' % (3 * (2 - s)))
        for t in range(3):
            p.l.append(Ins('%s %s, %s, %s, %s' % (MF16, vr(LD + 4 * t), vr(LA + 12 * t + 4 * s), vr(XL + 4 * s),
                                                  '0' if s == 0 else vr(LD + 4 * t))))
    for t in range(3):
        p('v_cvt_pk_bf16_f32 v%d, v%d, v%d' % (LD + 4 * t, LD + 4 * t, LD + 4 * t + 1))
        p('v_cvt_pk_bf16_f32 v%d, v%d, v%d' % (LD + 4 * t + 1, LD + 4 * t + 2, LD + 4 * t + 3))
        p('ds_write_b64 v130, %s offset:%d' % (vr(LD + 4 * t, 2), 64 * t))
    p('s_mov_b64 exec, 1')
    p('ds_add_u32 v22, v23')
    p('s_mov_b64 exec, -1')
    fstamp(p, 2)
    p('s_branch L_go')
    nstamp[0] = k0
    p('L_gen1b:')
    p('s_setprio 1')
    AE, AO, BE, BO, FD = 128, 129, 130, 131, 132
    p('s_and_b32 s44, s28, 1')
    p('s_lshr_b32 s45, s28, 1')
    p('v_lshrrev_b32 v21, 4, v0')
    p('v_and_b32 v22, 3, v0')
    p('v_bfe_u32 v23, v0, 2, 2')
    p('v_lshl_add_u32 v22, v23, 3, v22')
    p('v_lshlrev_b32 v23, 1, v23')
    p('v_and_b32 v23, 2, v23')
    p('v_xor_b32 v23, v23, v21')
    p('v_lshlrev_b32 v23, 4, v23')
    p('s_movk_i32 s40, 384')
    p('v_mad_u32_u24 v22, v22, s40, v23')
    p('v_and_b32 v23, 2, v0')
    p('v_lshlrev_b32 v23, 5, v23')
    p('v_add_u32 v24, v22, v23')
    p('v_sub_u32 v25, v22, v23')
    p('s_mul_i32 s46, s44, 1536')
    p('s_add_u32 s46, s46, %d' % RAWM)
    p('v_add_u32 v%d, s46, v24' % AE)
    p('v_add_u32 v%d, s46, v25' % AO)
    p('s_mul_i32 s46, s45, 1536')
    p('s_add_u32 s46, s46, %d' % RAWM)
    p('v_add_u32 v%d, s46, v24' % BE)
    p('v_add_u32 v%d, s46, v25' % BO)
    p('s_mul_i32 s46, s45, 3072')
    p('s_lshl_b32 s47, s44, 3')
    p('s_add_u32 s46, s46, s47')
    img_addr(p, 22, 22)
    p('v_add_u32 v%d, s46, v22' % FD)
    p('s_mov_b32 s49, %s' % CS_HEX)
    win_base(p)
    p('s_mov_b32 s12, s4')
    p('s_mov_b32 s13, s5')
    x_offsets(p, 22)
    fstamp(p, 0)
    p('s_barrier')
    fstamp(p, 1)
    p('s_setprio %d' % P_FM)
    p('s_waitcnt vmcnt(0)')
    p.extend(stamp())
    p('s_barrier')
    p.extend(stamp())

    def postM(a, t, acc):
        q = Prog()
        for k in range(4):
            q('v_mul_f32 %s, s49, %s' % (acc[k], acc[k]))
        q.l.append(cvt(acc[0], acc[0], acc[1]))
        q.l.append(cvt(acc[1], acc[2], acc[3]))
        q('ds_write_b64 v%d, %s offset:%d' % (FD, acc[0:2], 6144 * t + 1024 * a))
        return q.l
    p.extend(fold_body(
        lambda a, ks, r: [Ins('ds_read_b128 %s, v%d offset:%d' % (r, AO if ks & 1 else AE, 12288 * a + 64 * ks))],
        lambda t, ks, r: [Ins('ds_read_b128 %s, v%d offset:%d' % (r, BE if ks & 1 else BO, 12288 * t + 64 * (3 + ks)))],
        postM, 'fm'))
    count(p, 4, 22)
    p.extend(stamp())
    p('s_setprio 1')
    if LONE:
        p('s_endpgm')
    poll(p, 4, 4, 'L_pollM1', 22)
    p.extend(stamp())
    x_dma(p)
    main_addresses(p, 22)
    p('s_branch L_go')
    nstamp[0] = k0
    p('L_gen2b:')
    fstamp(p, 1)
    p('s_cmp_lt_u32 s28, 2')
    p('s_waitcnt lgkmcnt(0)')
    p('s_cselect_b32 s24, s6, s8')
    p('s_cselect_b32 s25, s7, s9')
    p('s_setprio 2')
    p.extend(stamp())
    p('s_barrier')
    p.extend(stamp())
    for G in range(3):
        p('s_mov_b32 m0, s38')
        p('s_add_u32 s38, s38, 6144')
        for m in range(3):
            p('buffer_load_dwordx4 v%d, s[24:27], s39 offen offset:%d lds' % (140 + m, 1024 * m))
        p('s_add_u32 s39, s39, s37')
        if G == 1:
            p('s_setprio 0')
            win_base(p)
            p('s_mov_b32 s12, s4')
            p('s_mov_b32 s13, s5')
            x_offsets(p, 22)
            main_addresses(p, 22)
            p('s_setprio 2')
    p('s_waitcnt vmcnt(0)')
    count(p, 12, 22)
    poll(p, 12, 4, 'L_pollV', 22)
    fstamp(p, 2)
    p('s_setprio %d' % P_FW)

    def postW(a, t, acc):
        return [cvt(acc[0], acc[0], acc[1]), cvt(acc[1], acc[2], acc[3]),
                Ins('ds_write_b64 v%d, %s offset:%d' % (FDW + t, acc[0:2], 1024 * a))]
    p.extend(fold_body(
        lambda a, ks, r: [Ins('ds_read_b128 %s, v%d offset:%d' % (r, FAa, 6144 * a + 64 * ks))],
        lambda t, ks, r: [Ins('ds_read_b64_tr_b16 %s, v%d offset:%d' % (r[2 * xx:2 * xx + 2], FBa,
                                                                        6144 * ks + 768 * xx + 64 * t))
                          for xx in range(2)],
        postW, 'fw'))
    p('s_setprio 2')
    count(p, 8, 22)
    p.extend(stamp())
    if LONE:
        p('s_endpgm')
    poll(p, 8, 4, 'L_pollW', 22)
    p.extend(stamp())
    x_dma(p)
    poll(p, 4, 4, 'L_pollM2', 22)
    p('L_go:')
    return p.l


def mf(d, a, b, first):
    return Ins('%s %s, %s, %s, %s' % (MF16, d, a, b, '0' if first else d))


def cvt(d, a, b):
    return Ins('v_cvt_pk_bf16_f32 %s, %s, %s' % (d, a, b))


def xred(p, op, a, tag):
    t = VReg('xr' + tag, 1)
    p('v_mov_b32 %s, %s' % (t, a))
    p('v_permlane32_swap_b32 %s, %s' % (a, t))
    p('%s %s, %s, %s' % (op, a, a, t))
    p('v_mov_b32 %s, %s' % (t, a))
    p('v_permlane16_swap_b32 %s, %s' % (a, t))
    p('%s %s, %s, %s' % (op, a, a, t))


def rowred(p, op, d, z):
    p('%s_dpp %s, %s, %s row_ror:8 row_mask:0xf bank_mask:0xf' % (op, d, z, z))
    for k in (4, 2, 1):
        p('%s_dpp %s, %s, %s row_ror:%d row_mask:0xf bank_mask:0xf' % (op, d, d, d, k))


def window(fast, withL, tag):
    V = lambda n, k=4: VReg(tag + n, k)
    XF = [[V('xf%d_%d' % (t, s)) for s in range(3)] for t in range(4)]
    EA = [V('ea%d' % s) for s in range(3)]
    E = [V('e%d' % t) for t in range(4)]
    W1 = [V('mt%d' % k) for k in range(18)]
    W2 = [V('wv%d' % k) for k in range(18)]
    TB = [[V('tb%d_%d' % (q, s)) for s in range(3)] for q in range(3)]
    S = [[V('s%d_%d' % (q, k)) for k in range(3)] for q in range(3)]
    PB = [[V('pb%d_%d' % (q, k)) for k in range(2)] for q in range(4)]
    XT = [[V('xt%d_%d' % (c, k)) for k in range(2)] for c in range(6)]
    YB = [[V('yb%d_%d' % (q, s)) for s in range(3)] for q in range(3)]
    eL = [V('el%d' % q, 1) for q in range(3)]
    sums = [V('sum%d' % q, 1) for q in range(3)]
    nt = 4 if withL else 3

    def reads():
        p = Prog()
        for t in range(3):
            for s in range(3):
                p('ds_read_b128 %s, %s offset:%d' % (XF[t][s], aX, 3072 * t + 64 * s))
        for s in range(3):
            p('ds_read_b128 %s, %s offset:%d' % (EA[s], aE, 64 * s))
            if withL:
                p('ds_read_b128 %s, %s offset:%d' % (XF[3][s], aX3, 64 * s))
        for k in range(18):
            p('ds_read_b128 %s, %s offset:%d' % (W1[k], aW, MT + 1024 * k))
        for c in range(6):
            a = aT0 if c % 2 == 0 else aT1
            for kt in range(3):
                p('ds_read_b64_tr_b16 %s, %s offset:%d' % (XT[c][kt >> 1][2 * (kt & 1):2 * (kt & 1) + 2], a,
                                                           3072 * kt + 64 * (c >> 1)))
            p('ds_read_b64_tr_b16 %s, %s offset:%d' % (XT[c][1][2:4], aT3, 32 * c))
        gate = []
        if withL:
            fa, fv = V('fa', 1), V('fv', 1)
            p('v_mov_b32 %s, %d' % (fa, FLG))
            p.l[-1].late = True
            p('ds_read_b32 %s, %s offset:8' % (fv, fa))
            p('v_readfirstlane_b32 s46, %s' % fv)
            p('s_cmp_lt_u32 s46, 4')
            p('s_cbranch_scc1 L_waitW')
            p.l[-1].rset.add(('v', fv.base))
            gate = [p.l[-1]]
            GATE.append((fa, fv))
        for k in range(18):
            p('ds_read_b128 %s, %s offset:%d' % (W2[k], aW, WV + WVJ * (k // 3) + 1024 * (k % 3)))
            p.l[-1].after = gate
        return p.l

    def T(qs):
        out = []
        for sp in range(3):
            for x in range(2):
                acc = {q: V('ta%d_%d_%d' % (q, sp, x)) for q in qs}
                for s in range(3):
                    for q in qs:
                        out.append(mf(acc[q], W1[(2 * sp + x) * 3 + s], XF[q][s], s == 0))
                for q in qs:
                    out.append(cvt(TB[q][sp][2 * x], acc[q][0], acc[q][1]))
                    out.append(cvt(TB[q][sp][2 * x + 1], acc[q][2], acc[q][3]))
        return out

    def Emf():
        return [mf(E[t], EA[s], XF[t][s], s == 0) for s in range(3) for t in range(nt)]

    def Lq():
        p = Prog()
        z, m, sm = V('z', 1), V('zm', 1), V('zs', 1)
        p('v_cndmask_b32 %s, %s, %s, s[%d:%d]' % (z, vNINF, E[3][1], sL48, sL48 + 1))
        for t, sg in ((0, sG0), (1, sG1), (2, sG2)):
            p('v_cndmask_b32 %s, %s, %s, s[%d:%d]' % (z, z, E[t][1], sg, sg + 1))
        rowred(p, 'v_max_f32', m, z)
        xred(p, 'v_max_f32', m, tag + 'zm')
        p('v_sub_f32 %s, %s, %s' % (z, z, m))
        p('v_exp_f32 %s, %s' % (z, z))
        rowred(p, 'v_add_f32', sm, z)
        xred(p, 'v_add_f32', sm, tag + 'zs')
        p('v_rcp_f32 %s, %s' % (sm, sm))
        p('v_mul_f32 %s, %s, %s' % (z, z, sm))
        p('v_cvt_pk_bf16_f32 %s, %s, %s' % (z, z, z))
        p('ds_write_b16 %s, %s offset:%d' % (aPSw, z, PS - SCR))
        w = p.l[-1]
        p('ds_read2_b64 %s, %s offset0:72 offset1:76' % (PB[3][0], aPSr))
        p.l[-1].after = [w]
        p('ds_read2_b64 %s, %s offset0:80 offset1:84' % (PB[3][1], aPSr))
        p.l[-1].after = [w]
        return p.l

    def keyL():
        return [Ins('v_cndmask_b32 %s, %s, %s, s[%d:%d]' % (eL[q], vNINF, E[q][0], sG0, sG0 + 1)) for q in range(3)]

    def Smf(q):
        return [mf(S[q][k], XF[k][s], TB[q][s], s == 0) for s in range(3) for k in range(3)]

    def soft(q):
        p = Prog()
        v = [S[q][k][r] for k in range(3) for r in range(4)] + [str(eL[q])]
        if not fast:
            m = V('m%d' % q, 1)
            p('v_max3_f32 %s, %s, %s, %s' % (m, v[12], v[0], v[1]))
            for k in range(2, 12, 2):
                p('v_max3_f32 %s, %s, %s, %s' % (m, m, v[k], v[k + 1]))
            xred(p, 'v_max_f32', m, tag + 'm%d' % q)
            for k in range(13):
                p('v_sub_f32 %s, %s, %s' % (v[k], v[k], m))
        order = [12] + list(range(12))
        for k in order:
            p('v_exp_f32 %s, %s' % (v[k], v[k]))
        p('v_add_f32 %s, %s, %s' % (sums[q], v[12], v[0]))
        for k in range(1, 12):
            p('v_add_f32 %s, %s, %s' % (sums[q], sums[q], v[k]))
        xred(p, 'v_add_f32', sums[q], tag + 's%d' % q)
        rc = V('rc%d' % q, 1)
        p('v_rcp_f32 %s, %s' % (rc, sums[q]))
        for k in range(6):
            p('v_mul_f32 %s, %s, %s' % (v[2 * k], v[2 * k], rc))
            p('v_mul_f32 %s, %s, %s' % (v[2 * k + 1], v[2 * k + 1], rc))
            p.l.append(cvt(PB[q][k >> 2][k & 3], v[2 * k], v[2 * k + 1]))
        p('v_mul_f32 %s, %s, %s' % (v[12], v[12], rc))
        p.l.append(cvt(PB[q][1][2], v[12], '0'))
        p('v_mov_b32 %s, 0' % PB[q][1][3])
        p.l[-1].after = [p.l[-2]]
        return p.l

    def check():
        p = Prog()
        hi, lo = V('hi', 1), V('lo', 1)
        p('v_max3_u32 %s, %s, %s, %s' % (hi, sums[0], sums[1], sums[2]))
        p('v_min3_u32 %s, %s, %s, %s' % (lo, sums[0], sums[1], sums[2]))
        p('v_cmp_lt_u32 vcc, 0x5f800000, %s' % hi)
        p('s_mov_b64 s[%d:%d], vcc' % (sBAD, sBAD + 1))
        p('v_cmp_gt_u32 vcc, 0x1f800000, %s' % lo)
        p('s_or_b64 s[%d:%d], s[%d:%d], vcc' % (sBAD, sBAD + 1, sBAD, sBAD + 1))
        return p.l

    def Y(q):
        out = []
        for s in range(3):
            acc = [V('ya%d_%d_%d' % (q, s, x)) for x in range(2)]
            for k in range(2):
                for x in range(2):
                    out.append(mf(acc[x], XT[2 * s + x][k], PB[q][k], k == 0))
            for r in range(4):
                out.append(cvt(YB[q][s][r], acc[0][r], acc[1][r]))
        return out

    def YLq():
        out = []
        ws = []
        for s in range(3):
            acc = [V('yl%d_%d' % (s, x)) for x in range(2)]
            for k in range(2):
                for x in range(2):
                    out.append(mf(acc[x], PB[3][k], XT[2 * s + x][k], k == 0))
            y = V('ylc%d' % s, 1)
            out.append(cvt(y, acc[0][0], acc[1][0]))
            out.append(Ins('ds_write_b32 %s, %s offset:%d' % (aYLw, y, YL - SCR + 64 * s)))
            ws.append(out[-1])
        one = V('one', 1)
        out.append(Ins('v_mov_b32 %s, 1' % one))
        out[-1].after = [ws[0]]
        out.append(Ins('ds_write_b32 %s, %s' % (aFw, one)))
        out[-1].after = ws
        return out

    def O(q):
        out = []
        OB = [V('ob%d_%d' % (q, r)) for r in range(4)]
        for jj in range(3):
            acc = [V('oa%d_%d_%d' % (q, jj, x)) for x in range(2)]
            for s in range(3):
                for x in range(2):
                    out.append(mf(acc[x], YB[q][s], W2[(2 * jj + x) * 3 + s], s == 0))
            for r in range(4):
                out.append(cvt(OB[r][jj], acc[0][r], acc[1][r]))
        for r in range(4):
            T0 = 16 * q + 4 * r
            row0 = T0 // 7
            thr = min(4, 7 * (row0 + 1) - T0)
            out.append(Ins('buffer_store_dwordx3 %s, %s, s[16:19], s%d offen offset:%d %s'
                           % (OB[r][0:3], vS[thr], sROW + row0, 192 * (T0 - 7 * row0), STFLAG)))
        return out

    L = (lambda f: f()) if withL else (lambda f: [])
    seq = reads()
    if ORDER == 'a':
        seq += T([0]) + Emf() + keyL() + L(Lq) + Smf(0) + soft(0) + T([1]) + Smf(1) + soft(1) + T([2]) + Smf(2) + soft(2)
        seq += Y(0) + L(YLq) + Y(1) + Y(2)
    elif ORDER == 'b':
        seq += T([0, 1]) + Emf() + keyL() + L(Lq) + Smf(0) + soft(0) + T([2]) + Smf(1) + soft(1) + Smf(2) + soft(2)
        seq += L(YLq) + Y(0) + Y(1) + Y(2)
    elif ORDER == 'c':
        seq += T([0, 1, 2]) + Emf() + keyL() + L(Lq) + Smf(0) + soft(0) + Smf(1) + soft(1) + Smf(2) + soft(2)
        seq += L(YLq) + Y(0) + Y(1) + Y(2)
    elif ORDER == 'd':
        seq += Emf() + keyL() + L(Lq) + T([0]) + Smf(0) + soft(0) + T([1]) + Smf(1) + soft(1) + T([2]) + Smf(2) + soft(2)
        seq += Y(0) + L(YLq) + Y(1) + Y(2)
    if fast:
        ck = check()
        ck[-1].deadline = 4 * sum(1 for i in seq if i.kind == 'mfma') + 8
        seq += ck
    nb = sum(1 for i in seq if i.kind == 'mfma')
    for q in range(3):
        o = O(q)
        nb += 18
        for i in o:
            if i.kind == 'vstore':
                i.deadline = 4 * nb + 16
        seq += o
    for i in seq:
        if i.kind == 'ds_write':
            i.deadline = 4 * (nb - 54)
    pre = []
    if withL and PRE:
        early = set(EA) | set(XF[3]) | set(W1[:PRE]) | {E[3]}
        rest = []
        for i in seq:
            wb = {VReg.all[r] for k, r in i.wset if k == 'v' and r >= VBASE}
            (pre if wb and wb <= early else rest).append(i)
        seq = rest
    return pre, seq, W2


def ltail(W2):
    p = Prog()
    YL2 = [VReg('yl2_%d' % s, 4) for s in range(3)]
    f = VReg('fl', 2)
    aFr, aYLr, vOL, t1, t2 = [VReg(n, 1) for n in 'aFr aYLr vOL t1 t2'.split()]
    p('v_add_u32 %s, -8, %s' % (aFr, aFw))
    p('s_mul_i32 s41, s28, %d' % SSTR)
    p('s_add_u32 s41, s41, %d' % YL)
    p('v_and_b32 %s, 48, v0' % t1)
    p('v_bfe_u32 %s, v0, 2, 2' % t2)
    p('v_min_u32 %s, 2, %s' % (t2, t2))
    p('v_mul_u32_u24 %s, %d, %s' % (t2, 4 * SSTR, t2))
    p('v_add3_u32 %s, %s, %s, s41' % (aYLr, t1, t2))
    p('L_poll2:')
    p('ds_read_b64 %s, %s' % (f, aFr))
    for s in range(3):
        p('ds_read_b128 %s, %s offset:%d' % (YL2[s], aYLr, 64 * s))
    p('s_mov_b32 s42, %d' % ((GENJ - 192) // 16))
    p('v_mul_lo_u32 %s, %s, s42' % (vOL, t1))
    p('v_add_u32 %s, %s, %s' % (vOL, vOL, vS[4]))
    p('s_waitcnt lgkmcnt(0)')
    p('v_and_b32 %s, %s, %s' % (f[0], f[0], f[1]))
    p('v_readfirstlane_b32 s40, %s' % f[0])
    p('s_cmp_eq_u32 s40, 0')
    p('s_cbranch_scc1 L_poll2')
    acc = [VReg('ola%d' % j, 4) for j in range(6)]
    ob = VReg('olb', 4)
    for s in range(3):
        for j in range(6):
            p.l.append(mf(acc[j], YL2[s], W2[3 * j + s], s == 0))
    for jj in range(3):
        p.l.append(cvt(ob[jj], acc[2 * jj][0], acc[2 * jj + 1][0]))
    p('buffer_store_dwordx3 %s, %s, s[16:19], s%d offen %s' % (ob[0:3], vOL, sBASE0, STFLAG))
    return p.l


def build():
    pro = prologue()
    pre, seq, W2 = window(FAST, True, 'f')
    main, t = sched.schedule(seq, slack=SLACK, verbose=True)
    pa, pv = VReg('pa', 1), VReg('pv', 1)
    q = Prog()
    q('v_mov_b32 %s, %d' % (pa, FLG))
    q('L_poll1:')
    q('ds_read_b32 %s, %s' % (pv, pa))
    q('s_waitcnt lgkmcnt(0)')
    q('v_readfirstlane_b32 s40, %s' % pv)
    q('s_cmp_lt_u32 s40, 4')
    q('s_cbranch_scc1 L_poll1')
    q.l[-1].rset.add(('v', pa.base))
    q('s_setprio 0')
    pre1 = [i for i in pre if i.kind == 'ds_read' and str(aE) + ' ' not in i.text]
    pre2 = [i for i in pre if i not in pre1]
    main = pre1 + q.l + stamp() + pre2 + [Ins('s_waitcnt vmcnt(0) lgkmcnt(0)')] + stamp() + main
    lt = ltail(W2)
    lblocks = set()
    for i in lt:
        lblocks |= blocks_of(i)
    live = {b for b in lblocks if b in PIN or b in W2}
    asg, peak = allocate(main, LO, HI, pre=dict(PIN), liveout=live)
    asgl, pl = allocate(lt, LO, HI, pre={b: asg[b] for b in live}, liveout=lblocks)
    print('peak regs', peak + 1, file=sys.stderr)
    mainr = rewrite(main, asg)
    k = [i for i, x in enumerate(mainr) if x.text.startswith('s_cbranch_scc1 L_waitW')][0]
    mainr.insert(k + 1, Ins('L_backW:'))
    body = pro + mainr
    body += stamp()
    p = Prog()
    p('s_cmp_lt_u32 s3, 8')
    p('s_cbranch_scc1 L_noL')
    body += p.l + rewrite(lt, asgl)
    p = Prog()
    p('L_noL:')
    if FAST:
        if FORCESLOW:
            p('s_branch L_slow')
        else:
            p('s_cmp_lg_u64 s[%d:%d], 0' % (sBAD, sBAD + 1))
            p('s_cbranch_scc1 L_slow')
    p('L_fin:')
    body += p.l
    body += stamp()
    body += stamp_dump()
    body.append(Ins('s_endpgm'))
    fa, fv = GATE[0]
    p = Prog()
    p('L_waitW:')
    p('v_mov_b32 v%d, %d' % (asg[fv], FLG))
    p('ds_read_b32 v%d, v%d offset:8' % (asg[fv], asg[fv]))
    p('s_waitcnt lgkmcnt(0)')
    p('v_readfirstlane_b32 s46, v%d' % asg[fv])
    p('s_cmp_lt_u32 s46, 4')
    p('s_cbranch_scc1 L_waitW')
    p('s_branch L_backW')
    body += p.l
    if FAST:
        p = Prog()
        p('L_slow:')
        p('s_waitcnt vmcnt(0) lgkmcnt(0)')
        p('s_nop 7')
        main_addresses(p, 22)
        _, seq2, _ = window(False, False, 'g')
        slow, _ = sched.schedule(seq2, slack=SLACK)
        asg2, _ = allocate(slow, LO, HI, pre=dict(PIN))
        body += p.l + rewrite(slow, asg2) + [Ins('s_branch L_fin')]
    body = finalize(body)
    hdr = open(os.path.join(os.path.dirname(os.path.abspath(__file__)), 'header.txt')).read()
    s = hdr
    s += '; @launch grid=(%d,1,1) block=(768,1,1) lds=%d\n' % (NWG + NH, LDS)
    s += '.amdgcn_target "amdgcn-amd-amdhsa--gfx950"\n.text\n.globl %s_kernel\n.p2align 8\n' % NAME
    s += '.type %s_kernel,@function\n%s_kernel:\n' % (NAME, NAME)
    s += render(body)
    s += 'L_end:\n    s_endpgm\n'
    s += '''.section .rodata,"a"
.p2align 6
.amdhsa_kernel %s_kernel
  .amdhsa_next_free_vgpr 168
  .amdhsa_next_free_sgpr 102
  .amdhsa_accum_offset 168
  .amdhsa_group_segment_fixed_size 0
  .amdhsa_kernarg_size 48
  .amdhsa_user_sgpr_count 2
  .amdhsa_user_sgpr_kernarg_segment_ptr 1
  .amdhsa_system_sgpr_workgroup_id_x 1
.end_amdhsa_kernel
''' % NAME
    print('main', stats(finalize(rewrite(main, asg))), 'nstamps', nstamp[0], file=sys.stderr)
    return s


if __name__ == '__main__':
    open(sys.argv[1], 'w').write(build())
```

```python
import sys, struct, math, os
sys.path.insert(0, os.path.dirname(os.path.abspath(__file__)))
from asmlib import *
import sched

NAME = 'standalone__swin_window_attn__vision'
XBYTES = 27433728
NWG = 243
MT, WV = 0, 18432
WVJ = 3072 + 48
XBUF0, XSTR = 37248, 9216
RAWM = XBUF0 + 4 * XSTR
RAWV = XBUF0 + 8 * XSTR
RAWO = RAWV + 18432
SCR = XBUF0 + 12 * XSTR
SSTR = 720
UT, YL, PS = SCR, SCR + 384, SCR + 576
XLT = SCR + 12 * SSTR
FLG = XLT + 2304
LDS = FLG + 128
ROWS = 72576
ROWJ = ROWS - 1344
GENJ = 18 * 508032
LOFF = 6 * ROWS + 6 * 192

opts = dict(a.split('=', 1) for a in sys.argv[2:] if '=' in a)
LDFLAG = opts.get('ld', '').replace('+', ' ')
STFLAG = opts.get('st', 'sc1').replace('+', ' ')
STAMP = int(opts.get('stamp', '0'))
AMP = int(opts.get('amp', '-1'))
AMPGEN = int(opts.get('ampgen', '-1'))
FAST = int(opts.get('fast', '1'))
FORCESLOW = int(opts.get('forceslow', '0'))
LONE = int(opts.get('lone', '0'))
SLACK = int(opts.get('slack', '16'))
ORDER = opts.get('order', 'd')
PREFETCH = int(opts.get('pf', '0'))
XSPLIT = int(opts.get('xsplit', '6'))
FWPRIO = int(opts.get('fwprio', '3'))
PRIO0 = int(opts.get('prio0', '0'))
NH = int(opts.get('nh', '8'))
XLTLATE = int(opts.get('xltlate', '0'))
PRE = int(opts.get('pre', '18'))
PSLEEP = int(opts.get('psleep', '0'))
P_L1 = int(opts.get('pl1', '3'))
P_FW = int(opts.get('pfw', '3'))
X1GATE = int(opts.get('x1gate', '0'))
ALIGN = int(opts.get('align', '1'))
PR2 = int(opts.get('pr2', '0'))
CHAIN = int(opts.get('chain', '1'))
STD0 = int(opts.get('std0', '20'))
STGAP = int(opts.get('stgap', '12'))
WARM = int(opts.get('warm', '1'))
PAIRZ = int(opts.get('pairz', '1'))
PH = opts.get('ph', '')
DRAIN = int(opts.get('drain', '1'))
XLTL = int(opts.get('xltl', '0'))
EORD = opts.get('eord', 'al0b1c2')
WSLACK = int(opts.get('wslack', '16'))
B0 = int(opts.get('b0', '0'))
SYNC = int(opts.get('sync', '0'))
NOST = int(opts.get('nost', '0'))
P_FM = int(opts.get('pfm', '3'))
sched.LDS_LAT = int(opts.get('ldslat', '28'))
sched.EAGER = int(opts.get('eager', '24'))

FMT = 8 if XLTL else 4
cscale = (96.0 ** -0.5) * math.log2(math.e)
CS_HEX = '0x%08x' % struct.unpack('<I', struct.pack('<f', cscale))[0]
for idx in range(2916):
    assert (idx * 1214) >> 16 == idx // 54
for e in range(96):
    assert (e * 43) >> 8 == e // 6

MF16 = 'v_mfma_f32_16x16x32_bf16'

PIN = {}


def pin(name, r):
    v = VReg(name, 1)
    PIN[v] = r
    v.ph = r
    return v


aW, aT0, aT1, aT3, aYLw, aFw, aPSr, aX, aX3, aE, aPSw, vNINF = [
    pin(n, k + 5) for k, n in enumerate('aW aT0 aT1 aT3 aYLw aFw aPSr aX aX3 aE aPSw vNINF'.split())]
vS = {k: pin('vS%d' % k, k) for k in (1, 2, 3, 4)}
LO, HI = 1, 167
L16 = 19
XOFF = 152
XL = 140
sBUF, sBASE0 = 60, 61
sROW = 30
sG0, sG1, sG2, sL48, sBAD = 50, 52, 54, 56, 58

nstamp = [0]
GATE = []
NHOP = []


def vr(b, n=4):
    return 'v[%d:%d]' % (b, b + n - 1)


def stamp(real=False):
    if not STAMP and AMP < 0:
        return []
    k = nstamp[0]
    nstamp[0] += 1
    p = Prog()
    if AMP >= 0:
        if k == 0 or k == AMP:
            p('s_memrealtime s[%d:%d]' % ((64, 65) if k == 0 else (68, 69)))
            p('s_waitcnt lgkmcnt(0)')
        return p.l
    p('%s s[%d:%d]' % ('s_memrealtime' if (real or STAMP == 3) else 's_memtime', 64 + 2 * k, 65 + 2 * k))
    p('s_waitcnt lgkmcnt(0)')
    return p.l


def fstamp(p, k):
    if STAMP != 2:
        return
    p('s_memtime s[%d:%d]' % (88 + 2 * k, 89 + 2 * k))
    p('s_waitcnt lgkmcnt(0)')


def stamp_dump():
    p = Prog()
    if AMP >= 0:
        p('s_waitcnt vmcnt(0)')
        p.extend(stamp())
        p('s_sub_u32 s68, s68, s64')
        p('s_mul_i32 s68, s68, 10')
        if AMPGEN >= 0:
            p('s_cmp_eq_u32 s29, %d' % AMPGEN)
            p('s_cselect_b32 s68, s68, 0')
        p('s_add_u32 s68, s68, 4000')
        p('s_min_u32 s68, s68, 40000')
        p('L_spin:')
        p('s_memrealtime s[66:67]')
        p('s_waitcnt lgkmcnt(0)')
        p('s_sub_u32 s66, s66, s64')
        p('s_cmp_lt_u32 s66, s68')
        p('s_cbranch_scc1 L_spin')
        return p.l
    if not STAMP:
        return []
    p('s_waitcnt vmcnt(0)')
    p.extend(stamp())
    p.extend(stamp(True))
    p('s_load_dwordx2 s[4:5], s[0:1], 40')
    p('s_mul_i32 s6, s2, 12')
    p('s_add_u32 s6, s6, s3')
    p('s_lshl_b32 s8, s6, 7')
    p('s_mov_b32 s6, 0x1000000')
    p('s_mov_b32 s7, 0x20000')
    p('s_getreg_b32 s9, hwreg(HW_REG_HW_ID)')
    p('s_getreg_b32 s10, hwreg(HW_REG_XCC_ID)')
    p('s_waitcnt lgkmcnt(0)')
    p('s_mov_b64 exec, 1')
    p('v_mov_b32 v1, 0')
    for k in range(nstamp[0]):
        p('v_mov_b32 v2, s%d' % (64 + 2 * k))
        p('buffer_store_dword v2, v1, s[4:7], s8 offen offset:%d' % (4 * k))
    if STAMP == 2:
        for k in range(6):
            p('v_mov_b32 v2, s%d' % (88 + 2 * k))
            p('buffer_store_dword v2, v1, s[4:7], s8 offen offset:%d' % (64 + 4 * k))
    p('v_mov_b32 v2, s9')
    p('buffer_store_dword v2, v1, s[4:7], s8 offen offset:120')
    p('v_mov_b32 v2, s10')
    p('buffer_store_dword v2, v1, s[4:7], s8 offen offset:124')
    return p.l


def x_dma(p, lo=0, hi=9):
    for n in range(lo, hi):
        r0 = (64 * n) // 84
        if n % 4 == 0 or n == lo:
            p('s_add_u32 s40, s%d, %d' % (sBUF, 1024 * (n & ~3)))
            p('s_mov_b32 m0, s40')
        p('s_add_u32 s41, s%d, %d' % (sROW, 1024 * (n & ~3) + ROWJ * r0))
        p('buffer_load_dwordx4 v%d, s[12:15], s41 offen offset:%d %s lds' % (XOFF + n, 1024 * (n & 3), LDFLAG))


def win_base(p):
    p('s_mov_b32 s14, %d' % XBYTES)
    p('s_mov_b32 s15, 0x20000')
    p('s_lshl_b32 s40, s2, 2')
    p('s_add_u32 s40, s40, s28')
    p('s_mul_i32 s41, s40, 1214')
    p('s_lshr_b32 s41, s41, 16')
    p('s_mul_i32 s41, s41, 435456')
    p('s_mul_i32 s40, s40, 1344')
    p('s_add_u32 s%d, s40, s41' % sBASE0)
    p('s_mul_i32 s40, s29, %d' % GENJ)
    p('s_add_u32 s%d, s40, s%d' % (sROW, sBASE0))
    p('s_add_u32 s%d, s%d, %d' % (sBASE0, sBASE0, LOFF))
    p('s_mul_i32 s%d, s3, %d' % (sBUF, XSTR))
    p('s_add_u32 s%d, s%d, %d' % (sBUF, sBUF, XBUF0))


def count(p, off, t):
    p('v_mov_b32 v%d, %d' % (t, FLG))
    p('v_mov_b32 v%d, 1' % (t + 1))
    p('s_mov_b64 exec, 1')
    p('ds_add_u32 v%d, v%d offset:%d' % (t, t + 1, off))
    p('s_mov_b64 exec, -1')


def poll(p, off, target, label, t):
    p('v_mov_b32 v%d, %d' % (t, FLG))
    p('%s:' % label)
    if PSLEEP:
        p('s_sleep %d' % PSLEEP)
    p('ds_read_b32 v%d, v%d offset:%d' % (t + 1, t, off))
    p('s_waitcnt lgkmcnt(0)')
    p('v_readfirstlane_b32 s40, v%d' % (t + 1))
    p('s_cmp_lt_u32 s40, %d' % target)
    p('s_cbranch_scc1 %s' % label)


def img_addr(p, d, t):
    p('v_lshrrev_b32 v%d, 2, v0' % t)
    p('v_bitop3_b32 v%d, v%d, 8, v0 bitop3:0x6a' % (t, t))
    p('v_lshlrev_b32 v%d, 4, v%d' % (d, t))


def x_offsets(p, t):
    sw = [XOFF, XOFF + 4, XOFF + 8]
    p('v_lshrrev_b32 v%d, 4, v0' % t)
    p('v_mul_u32_u24 v%d, 43, v%d' % (t, t))
    p('s_mov_b32 s41, 0x30')
    for m in range(3):
        if m:
            p('v_add_u32 v%d, %d, v%d' % (t + 1, 4 * m * 43, t))
            p('v_lshrrev_b32 v%d, 3, v%d' % (t + 1, t + 1))
        else:
            p('v_lshrrev_b32 v%d, 3, v%d' % (t + 1, t))
        p('v_bitop3_b32 v%d, v%d, s41, v%d bitop3:0x6a' % (sw[m], t + 1, L16))
        p('v_add_u32 v%d, 0x%x, v%d' % (t + 2 + m, ROWJ, sw[m]))
    for n in range(9):
        r0 = (64 * n) // 84
        thr = 84 * (r0 + 1) - 64 * n
        if thr >= 64:
            assert XOFF + n == sw[n % 3]
        else:
            p('s_lshl_b64 s[42:43], -1, %d' % thr)
            p('v_cndmask_b32 v%d, v%d, v%d, s[42:43]' % (XOFF + n, sw[n % 3], t + 2 + n % 3))


def main_addresses(p, t):
    i, g, a, b, c = t, t + 1, t + 2, t + 3, t + 4
    p('v_and_b32 v%d, 15, v0' % i)
    p('v_lshrrev_b32 v%d, 4, v0' % g)
    img_addr(p, aW.ph, a)
    p('s_movk_i32 s40, 192')
    p('v_and_b32 v%d, 3, v0' % a)
    p('v_bfe_u32 v%d, v0, 2, 2' % b)
    p('v_lshl_add_u32 v%d, v%d, 2, v%d' % (c, a, b))
    p('v_xor_b32 v%d, v%d, v%d' % (aX.ph, g, a))
    p('v_lshl_add_u32 v%d, v%d, 4, s%d' % (aX.ph, aX.ph, sBUF))
    p('v_mad_u32_u24 v%d, v%d, s40, v%d' % (aX.ph, c, aX.ph))
    p('s_mul_i32 s41, s28, 576')
    p('s_mul_i32 s42, s29, 192')
    p('s_add_u32 s41, s41, s42')
    p('s_add_u32 s41, s41, %d' % XLT)
    p('v_lshl_add_u32 v%d, v%d, 4, s41' % (aX3.ph, g))
    p('v_lshl_add_u32 v%d, v%d, 3, s41' % (aT3.ph, a))
    p('v_lshlrev_b32 v%d, 1, v%d' % (c, b))
    p('v_xor_b32 v%d, v%d, v%d' % (c, c, a))
    p('v_lshl_add_u32 v%d, v%d, 3, s%d' % (aT0.ph, c, sBUF))
    p('v_lshl_add_u32 v%d, v%d, 2, v%d' % (c, b, g))
    p('v_mad_u32_u24 v%d, v%d, s40, v%d' % (aT0.ph, c, aT0.ph))
    p('v_xor_b32 v%d, 32, v%d' % (aT1.ph, aT0.ph))
    p('s_mul_i32 s41, s3, %d' % SSTR)
    p('s_add_u32 s41, s41, %d' % SCR)
    p('v_lshl_add_u32 v%d, v%d, 4, s41' % (aE.ph, g))
    p('v_and_b32 v%d, 1, v0' % c)
    p('v_mad_u32_u24 v%d, v%d, s40, v%d' % (aE.ph, c, aE.ph))
    p('v_lshl_add_u32 v%d, v0, 1, s41' % aPSw.ph)
    p('v_lshl_add_u32 v%d, v%d, 3, s41' % (aPSr.ph, g))
    p('v_lshl_add_u32 v%d, v%d, 2, s41' % (aYLw.ph, i))
    p('s_lshl_b32 s41, s28, 4')
    p('s_lshl_b32 s42, s29, 2')
    p('s_add_u32 s41, s41, s42')
    p('s_add_u32 s41, s41, %d' % (FLG + 16))
    p('v_mov_b32 v%d, s41' % aFw.ph)
    p('v_mov_b32 v%d, 0xff800000' % vNINF.ph)
    p('v_mul_u32_u24 v%d, 12, v%d' % (c, i))
    p('v_mad_u32_u24 v%d, v%d, s40, v%d' % (vS[4].ph, g, c))
    p('v_add_u32 v%d, 0x%x, v%d' % (c, ROWJ, vS[4].ph))
    for thr in (1, 2, 3):
        p('s_lshl_b64 s[42:43], -1, %d' % (16 * thr))
        p('v_cndmask_b32 v%d, v%d, v%d, s[42:43]' % (vS[thr].ph, vS[4].ph, c))
    for k in range(1, 7):
        p('s_add_u32 s%d, s%d, %d' % (sROW + k, sROW, ROWS * k))
    p('s_mov_b32 s16, s10')
    p('s_mov_b32 s17, s11')
    p('s_mov_b32 s18, %d' % XBYTES)
    p('s_mov_b32 s19, 0x20000')
    p('s_mov_b64 s[%d:%d], 0xffff' % (sG0, sG0 + 1))
    p('s_lshl_b64 s[%d:%d], s[%d:%d], 16' % (sG1, sG1 + 1, sG0, sG0 + 1))
    p('s_lshl_b64 s[%d:%d], s[%d:%d], 32' % (sG2, sG2 + 1, sG0, sG0 + 1))
    p('s_lshl_b64 s[%d:%d], 1, 48' % (sL48, sL48 + 1))


def fold_body(rdA, rdB, post, tag):
    A = [[VReg('%sa%d%d' % (tag, a, k), 4) for k in range(3)] for a in range(3)]
    B = [[VReg('%sb%d%d' % (tag, a, k), 4) for k in range(3)] for a in range(3)]
    seq = []
    for kind, a in (('A', 0), ('B', 0), ('B', 1), ('A', 1), ('B', 2), ('A', 2)):
        for ks in range(3):
            seq += rdA(a, ks, A[a][ks]) if kind == 'A' else rdB(a, ks, B[a][ks])
    for i in seq:
        i.slack = 1000
    nb = 0
    for a, t in ((0, 0), (0, 1), (1, 0), (1, 1), (0, 2), (1, 2), (2, 0), (2, 1), (2, 2)):
        acc = VReg('%sd%d%d' % (tag, a, t), 4)
        for ks in range(3):
            seq.append(mf(acc, A[a][ks], B[t][ks], ks == 0))
        nb += 3
        l = post(a, t, acc)
        l[-1].deadline = 4 * nb + 24
        seq += l
    save = sched.LDS_LAT
    sched.LDS_LAT = 24
    out, t = sched.schedule(seq, verbose=True)
    sched.LDS_LAT = save
    asg, _ = allocate(out, 28, 127)
    return rewrite(out, asg)


def call(p, label):
    p('s_call_b64 s[62:63], %s' % label)


def prologue():
    p = Prog()
    W = L16
    p('L_start:')
    p.extend(stamp(True))
    p.extend(stamp())
    p('s_load_dwordx4 s[4:7], s[0:1], 0')
    p('s_load_dwordx4 s[8:11], s[0:1], 16')
    p('s_sub_u32 s2, s2, %d' % NH)
    p('s_cmp_ge_u32 s2, %d' % NWG)
    p('s_cbranch_scc1 L_help')
    p('v_lshrrev_b32 v20, 6, v0')
    p('v_readfirstlane_b32 s3, v20')
    p('v_and_b32 v0, 63, v0')
    p('v_lshlrev_b32 v%d, 4, v0' % W)
    p('s_and_b32 s28, s3, 3')
    p('s_lshr_b32 s29, s3, 2')
    p('s_cmp_eq_u32 s29, 0')
    p('s_cbranch_scc1 L_gen0')
    p('s_cmp_eq_u32 s29, 2')
    p('s_cbranch_scc1 L_gen2')
    k0 = nstamp[0]
    p('s_setprio 3')
    p('v_lshrrev_b32 v22, 3, v0')
    p('v_mul_u32_u24 v22, 43, v22')
    p('s_lshl_b32 s40, s28, 5')
    p('s_and_b32 s40, s40, 32')
    p('v_xor_b32 v23, s40, v%d' % W)
    p('s_movk_i32 s41, 64')
    p('s_movk_i32 s42, 192')
    for m in range(3):
        if m:
            p('v_add_u32 v22, 344, v22')
        p('v_lshrrev_b32 v27, 2, v22')
        p('v_lshrrev_b32 v28, 7, v22')
        p('v_bitop3_b32 v27, v27, s41, v23 bitop3:0x6a')
        p('v_mad_u32_u24 v%d, v28, s42, v27' % (24 + m))
    p('s_mov_b32 s22, 55296')
    p('s_mov_b32 s23, 0x20000')
    p('s_mul_i32 s43, s28, 4608')
    p('s_mul_i32 s44, s28, 3072')
    p('s_add_u32 s44, s44, %d' % RAWM)
    p('s_mov_b32 m0, s44')
    for G in (1, 2):
        p('s_add_u32 s%d, s43, %d' % (43 + 2 * G, 18432 * G))
        p('s_add_u32 s%d, s44, %d' % (44 + 2 * G, 12288 * G))
    p('s_waitcnt lgkmcnt(0)')
    p('s_mov_b32 s20, s6')
    p('s_mov_b32 s21, s7')
    for G in range(3):
        if G:
            p('s_mov_b32 m0, s%d' % (44 + 2 * G))
        for m in range(3):
            p('buffer_load_dwordx4 v%d, s[20:23], s%d offen offset:%d lds' % (24 + m, 43 + 2 * G, 1024 * m))
    fstamp(p, 0)
    if B0:
        p('s_barrier')
    p('s_branch L_gen1b')
    p('L_gen0:')
    p('s_setprio 2')
    win_base(p)
    p('v_lshrrev_b32 v22, 2, v0')
    p('v_mul_u32_u24 v22, 43, v22')
    p('v_lshrrev_b32 v22, 7, v22')
    p('s_mov_b32 s41, %d' % (GENJ - 192))
    p('v_mad_u32_u24 v145, v22, s41, v%d' % W)
    p('s_mul_i32 s40, s28, 576')
    p('s_add_u32 s40, s40, %d' % XLT)
    p('s_mov_b32 m0, s40')
    p('s_waitcnt lgkmcnt(0)')
    p('s_mov_b32 s12, s4')
    p('s_mov_b32 s13, s5')
    def xlt_load():
        p('s_bfm_b64 exec, 36, 0')
        p('buffer_load_dwordx4 v145, s[12:15], s%d offen lds' % sBASE0)
        p('s_mov_b64 exec, -1')
    if not XLTL:
        xlt_load()
    p('s_getpc_b64 s[62:63]')
    p('L_pc0:')
    p('s_add_u32 s62, s62, L_g0x-L_pc0')
    p('s_addc_u32 s63, s63, 0')
    p('L_sub_xoff:')
    x_offsets(p, 22)
    p('s_setpc_b64 s[62:63]')
    p('L_g0x:')
    p('s_add_u32 s62, s62, L_gen0b-L_g0x')
    p('s_addc_u32 s63, s63, 0')
    fstamp(p, 0)
    if B0:
        p('s_barrier')
    fstamp(p, 1)
    if XLTL:
        xlt_load()
    p('L_sub_xdma:')
    x_dma(p, 0, XSPLIT)
    p('s_setpc_b64 s[62:63]')
    p('L_gen2:')
    if WARM:
        p('s_mov_b64 exec, 0')
        p('s_cmp_eq_u32 s28, 0')
        p('s_cbranch_scc1 L_h0')
        p('s_cmp_eq_u32 s28, 1')
        p('s_cbranch_scc1 L_h1')
        p('s_cmp_eq_u32 s28, 2')
        p('s_cbranch_scc1 L_h2')
        p('s_branch L_h3')
        p('L_hopret:')
        p('s_mov_b64 exec, -1')
    p('v_and_b32 v23, 31, v0')
    p('v_lshlrev_b32 v23, 2, v23')
    p('v_add_u32 v23, %d, v23' % FLG)
    p('v_mov_b32 v22, 0')
    p('ds_write_b32 v23, v22')
    fstamp(p, 0)
    if B0:
        p('s_barrier')
    fstamp(p, 1)
    p('v_lshrrev_b32 v22, 2, v0')
    p('v_mul_u32_u24 v22, 43, v22')
    p('s_and_b32 s48, s28, 1')
    p('s_lshl_b32 s43, s48, 1')
    p('s_movk_i32 s42, 192')
    p('s_movk_i32 s26, 18432')
    p('s_movk_i32 s47, 3072')
    p('s_cmp_lt_u32 s28, 2')
    p('s_cselect_b32 s42, 576, s42')
    p('s_cselect_b32 s43, s43, 0')
    p('s_cselect_b32 s26, 55296, s26')
    p('s_cselect_b32 s47, 9216, s47')
    p('s_cselect_b32 s39, 384, 0')
    p('s_mov_b32 s27, 0x20000')
    p('s_movk_i32 s41, 32')
    for m in range(3):
        if m:
            p('v_add_u32 v22, 688, v22')
        p('v_lshrrev_b32 v27, 5, v22')
        p('v_lshrrev_b32 v28, 7, v22')
        p('v_bitop3_b32 v27, v27, s41, v%d bitop3:0x6a' % W)
        p('v_xor_b32 v29, s43, v28')
        p('v_mad_u32_u24 v27, v29, s42, v27')
        p('v_mul_u32_u24 v28, 0xc0, v28')
        p('v_sub_u32 v%d, v27, v28' % (140 + m))
    p('s_mul_i32 s40, s48, s47')
    p('s_add_u32 s39, s39, s40')
    p('s_lshl_b32 s37, s47, 1')
    p('s_lshr_b32 s38, s28, 1')
    p('s_mul_i32 s38, s38, 18432')
    p('s_mul_i32 s40, s48, 3072')
    p('s_add_u32 s38, s38, s40')
    p('s_add_u32 s38, s38, %d' % RAWV)
    p('s_cmp_lt_u32 s28, 2')
    p('s_waitcnt lgkmcnt(0)')
    p('s_cselect_b32 s24, s6, s8')
    p('s_cselect_b32 s25, s7, s9')
    p('s_setprio 1')
    p.extend(stamp())
    p('s_barrier')
    p.extend(stamp())
    for G in range(3):
        p('s_mov_b32 m0, s38')
        p('s_add_u32 s38, s38, 6144')
        for m in range(3):
            p('buffer_load_dwordx4 v%d, s[24:27], s39 offen offset:%d lds' % (140 + m, 1024 * m))
        p('s_add_u32 s39, s39, s37')
        if G == 1:
            p('s_branch L_gen2b')
            mark = len(p.l)
    last_group = p.l[mark:]
    del p.l[mark:]
    k2 = nstamp[0]
    nstamp[0] = k0
    p('L_help:')
    p('s_cmp_lt_u32 s2, %d' % (0x100000000 - NH) if NH else 's_cmp_eq_u32 s2, s2')
    p('s_cbranch_scc1 L_end')
    if NH:
        p('s_getpc_b64 s[44:45]')
        p('L_pch:')
        p('s_sub_u32 s44, s44, L_pch-L_start')
        p('s_subb_u32 s45, s45, 0')
        p('v_lshlrev_b32 v1, 7, v0')
        p('v_min_u32 v24, L_fin-L_start, v1')
        p('v_mov_b32 v25, s45')
        p('v_add_co_u32 v24, vcc, s44, v24')
        p('v_addc_co_u32 v25, vcc, 0, v25, vcc')
        p('global_load_dword v26, v[24:25], off')
        p('s_mov_b32 s22, 55296')
        p('s_mov_b32 s23, 0x20000')
        p('s_movk_i32 s26, 18432')
        p('s_mov_b32 s27, 0x20000')
        p('v_subrev_u32 v2, %d, v1' % (448 * 128))
        p('s_waitcnt lgkmcnt(0)')
        p('s_mov_b32 s20, s6')
        p('s_mov_b32 s21, s7')
        p('s_mov_b32 s24, s8')
        p('s_mov_b32 s25, s9')
        p('buffer_load_dword v27, v1, s[20:23], 0 offen')
        p('buffer_load_dword v28, v2, s[24:27], 0 offen')
        p('s_endpgm')
    p('L_gen1b:')
    fstamp(p, 1)
    AE, AO, BE, BO, FD = 128, 129, 130, 131, 132
    p('s_and_b32 s44, s28, 1')
    p('s_lshr_b32 s45, s28, 1')
    p('v_lshrrev_b32 v21, 4, v0')
    p('v_and_b32 v22, 3, v0')
    p('v_bfe_u32 v23, v0, 2, 2')
    p('v_lshl_add_u32 v22, v23, 3, v22')
    p('v_lshlrev_b32 v23, 1, v23')
    p('v_and_b32 v23, 2, v23')
    p('v_xor_b32 v23, v23, v21')
    p('v_lshlrev_b32 v23, 4, v23')
    p('s_movk_i32 s40, 384')
    p('v_mad_u32_u24 v22, v22, s40, v23')
    p('v_and_b32 v23, 2, v0')
    p('v_lshlrev_b32 v23, 5, v23')
    p('v_add_u32 v24, v22, v23')
    p('v_sub_u32 v25, v22, v23')
    p('s_mul_i32 s46, s44, 1536')
    p('s_add_u32 s46, s46, %d' % RAWM)
    p('v_add_u32 v%d, s46, v24' % AE)
    p('v_add_u32 v%d, s46, v25' % AO)
    p('s_mul_i32 s46, s45, 1536')
    p('s_add_u32 s46, s46, %d' % RAWM)
    p('v_add_u32 v%d, s46, v24' % BE)
    p('v_add_u32 v%d, s46, v25' % BO)
    p('s_mul_i32 s46, s45, 3072')
    p('s_lshl_b32 s47, s44, 3')
    p('s_add_u32 s46, s46, s47')
    img_addr(p, 22, 22)
    p('v_add_u32 v%d, s46, v22' % FD)
    p('s_mov_b32 s49, %s' % CS_HEX)
    p('s_waitcnt vmcnt(0)')
    p.extend(stamp())
    p('s_barrier')
    p.extend(stamp())

    def postM(a, t, acc):
        q = Prog()
        for k in range(4):
            q('v_mul_f32 %s, s49, %s' % (acc[k], acc[k]))
        q.l.append(cvt(acc[0], acc[0], acc[1]))
        q.l.append(cvt(acc[1], acc[2], acc[3]))
        q('ds_write_b64 v%d, %s offset:%d' % (FD, acc[0:2], 6144 * t + 1024 * a))
        return q.l
    p.extend(fold_body(
        lambda a, ks, r: [Ins('ds_read_b128 %s, v%d offset:%d' % (r, AO if ks & 1 else AE, 12288 * a + 64 * ks))],
        lambda t, ks, r: [Ins('ds_read_b128 %s, v%d offset:%d' % (r, BE if ks & 1 else BO, 12288 * t + 64 * (3 + ks)))],
        postM, 'fm'))
    count(p, 4, 22)
    p.extend(stamp())
    p('s_setprio 1')
    if LONE:
        p('s_endpgm')
    win_base(p)
    p('s_mov_b32 s12, s4')
    p('s_mov_b32 s13, s5')
    call(p, 'L_sub_xoff')
    call(p, 'L_sub_addr')
    poll(p, 4, FMT, 'L_pollM1', 22)
    if X1GATE:
        poll(p, 12, X1GATE, 'L_pollX1', 22)
    p.extend(stamp())
    call(p, 'L_sub_xdma')
    call(p, 'L_sub_xdma2')
    p('s_branch L_go')
    nstamp[0] = k2
    p('L_pad:')
    p('L_h2:')
    if WARM:
        p('s_branch L_hopret')
    p('L_gen2b:')
    p('s_setprio 0')
    p('v_and_b32 v20, 15, v0')
    p('v_lshrrev_b32 v21, 4, v0')
    p('v_and_b32 v25, 3, v0')
    p('s_and_b32 s44, s28, 1')
    p('s_lshr_b32 s45, s28, 1')
    p('s_lshl_b32 s41, s44, 3')
    FAa, FBa, FDW = 132, 133, 134
    p('v_and_b32 v22, 1, v0')
    p('v_xor_b32 v24, s44, v22')
    p('v_lshlrev_b32 v22, 4, v22')
    p('v_lshl_add_u32 v22, v24, 1, v22')
    p('v_and_b32 v23, 12, v0')
    p('v_bfe_u32 v24, v0, 1, 1')
    p('v_add3_u32 v22, v22, v23, v24')
    p('v_bfe_u32 v23, v0, 3, 1')
    p('v_lshlrev_b32 v23, 1, v23')
    p('v_xor_b32 v23, v23, v21')
    p('s_mov_b32 s46, %d' % RAWV)
    p('v_lshl_add_u32 v23, v23, 4, s46')
    p('s_movk_i32 s40, 192')
    p('v_mad_u32_u24 v%d, v22, s40, v23' % FAa)
    p('v_bfe_u32 v22, v0, 2, 2')
    p('v_lshl_add_u32 v22, v21, 3, v22')
    p('v_xor_b32 v23, s45, v21')
    p('v_and_b32 v23, 1, v23')
    p('v_lshlrev_b32 v23, 5, v23')
    p('v_mad_u32_u24 v22, v22, s40, v23')
    p('v_lshl_add_u32 v22, v25, 3, v22')
    p('v_add_u32 v%d, %d, v22' % (FBa, RAWO))
    p('s_lshl_b32 s46, s45, 4')
    p('s_add_u32 s47, s41, %d' % WV)
    p('v_lshl_add_u32 v24, v21, 8, s47')
    p('s_movk_i32 s41, %d' % WVJ)
    p('v_lshrrev_b32 v26, 2, v0')
    p('v_and_b32 v26, 8, v26')
    for t in range(3):
        p('v_add_u32 v22, s46, v20')
        p('v_mul_u32_u24 v23, 43, v22')
        p('v_lshrrev_b32 v23, 8, v23')
        p('v_mad_u32_u24 v22, v22, s41, v24')
        p('v_xor_b32 v27, v26, v23')
        p('v_lshl_add_u32 v22, v27, 4, v22')
        p('v_mul_u32_u24 v23, %d, v23' % (6 * WVJ))
        p('v_sub_u32 v%d, v22, v23' % (FDW + t))
        if t < 2:
            p('s_add_u32 s46, s46, 32')
    p('s_setprio 2')
    p.extend(last_group)
    p('s_setprio 0')
    win_base(p)
    p('s_mov_b32 s12, s4')
    p('s_mov_b32 s13, s5')
    call(p, 'L_sub_xoff')
    call(p, 'L_sub_addr')
    p('s_setprio 3')
    p('s_waitcnt vmcnt(0)')
    count(p, 12, 22)
    poll(p, 12, 4, 'L_pollV', 22)
    fstamp(p, 2)
    p('s_setprio %d' % P_FW)

    def postW(a, t, acc):
        return [cvt(acc[0], acc[0], acc[1]), cvt(acc[1], acc[2], acc[3]),
                Ins('ds_write_b64 v%d, %s offset:%d' % (FDW + t, acc[0:2], 1024 * a))]
    p.extend(fold_body(
        lambda a, ks, r: [Ins('ds_read_b128 %s, v%d offset:%d' % (r, FAa, 6144 * a + 64 * ks))],
        lambda t, ks, r: [Ins('ds_read_b64_tr_b16 %s, v%d offset:%d' % (r[2 * xx:2 * xx + 2], FBa,
                                                                        6144 * ks + 768 * xx + 64 * t))
                          for xx in range(2)],
        postW, 'fw'))
    p('s_setprio 2')
    count(p, 8, 22)
    p.extend(stamp())
    if LONE:
        p('s_endpgm')
    poll(p, 8, 4, 'L_pollW', 22)
    p.extend(stamp())
    call(p, 'L_sub_xdma')
    call(p, 'L_sub_xdma2')
    poll(p, 4, FMT, 'L_pollM2', 22)
    p('s_branch L_go')
    nstamp[0] = k0
    if WARM:
        p('L_h0:')
        p('s_branch L_hopret')
    p('L_gen0b:')
    p('s_add_u32 s62, s62, L_g0z-L_gen0b')
    p('s_addc_u32 s63, s63, 0')
    if not XLTL:
        p('s_waitcnt vmcnt(%d)' % XSPLIT)
    p.extend(stamp())
    p('s_barrier')
    p.extend(stamp())
    p('L_sub_xdma2:')
    x_dma(p, XSPLIT, 9)
    p('s_setpc_b64 s[62:63]')
    p('L_g0z:')
    p('s_add_u32 s62, s62, L_g0y-L_g0z')
    p('s_addc_u32 s63, s63, 0')
    p('s_setprio 0')
    p('v_and_b32 v20, 15, v0')
    p('v_lshrrev_b32 v21, 4, v0')
    p('v_min_u32 v24, 11, v20')
    p('v_and_b32 v26, 48, v0')
    p('v_and_b32 v22, 3, v24')
    p('v_mul_u32_u24 v22, 576, v22')
    p('v_lshrrev_b32 v23, 2, v24')
    p('v_mul_u32_u24 v23, 0xc0, v23')
    p('v_add3_u32 v22, v22, v23, v26')
    p('v_add_u32 v128, %d, v22' % XLT)
    p('s_and_b32 s44, s28, 1')
    p('s_lshr_b32 s45, s28, 1')
    p('s_lshl_b32 s41, s44, 3')
    p('s_mul_i32 s40, s44, 3072')
    img_addr(p, 22, 22)
    p('v_add_u32 v129, s40, v22')
    p('v_and_b32 v25, 3, v0')
    p('v_lshlrev_b32 v22, 8, v25')
    p('v_lshrrev_b32 v23, 2, v0')
    p('v_lshlrev_b32 v27, 2, v0')
    p('v_bitop3_b32 v23, v27, 8, v23 bitop3:0x6a')
    p('v_lshl_add_u32 v22, v23, 4, v22')
    p('v_add_u32 v131, s41, v22')
    p('s_cmp_eq_u32 s45, 0')
    p('s_cselect_b32 s42, 192, 0')
    p('s_add_u32 s42, s42, s41')
    p('s_add_u32 s42, s42, %d' % UT)
    p('v_mul_u32_u24 v24, %d, v24' % SSTR)
    p('v_add3_u32 v130, v24, v26, s42')
    p('L_sub_addr:')
    main_addresses(p, 22)
    p('s_setpc_b64 s[62:63]')
    p('L_g0y:')
    p('s_setprio %d' % P_L1)
    if XLTL:
        p('s_waitcnt vmcnt(9)')
        count(p, 4, 22)
    p.extend(stamp())
    poll(p, 4, FMT, 'L_pollM0', 22)
    p.extend(stamp())
    LA, LD, XL = 36, 72, 84
    for s in range(3):
        p('ds_read_b128 %s, v128 offset:%d' % (vr(XL + 4 * s), 64 * s))
    p('s_cmp_lg_u32 s45, 0')
    p('s_cbranch_scc1 L_L1u')
    for s in range(3):
        for t in range(3):
            p('ds_read_b128 %s, v129 offset:%d' % (vr(LA + 12 * t + 4 * s), 6144 * t + 1024 * s))
    p('s_branch L_L1c')
    p('L_L1u:')
    p.l.append(reset_lgkm())
    for s in range(3):
        for t in range(3):
            for x in range(2):
                p('ds_read_b64_tr_b16 %s, v131 offset:%d' % (vr(LA + 12 * t + 4 * s + 2 * x, 2),
                                                             6144 * s + 3072 * x + 1024 * t))
    p('L_L1c:')
    p('v_mov_b32 v22, %d' % FLG)
    p('v_mov_b32 v23, 1')
    for s in range(3):
        p('s_waitcnt lgkmcnt(%d)' % (3 * (2 - s)))
        for t in range(3):
            p.l.append(Ins('%s %s, %s, %s, %s' % (MF16, vr(LD + 4 * t), vr(LA + 12 * t + 4 * s), vr(XL + 4 * s),
                                                  '0' if s == 0 else vr(LD + 4 * t))))
    for t in range(3):
        p('v_cvt_pk_bf16_f32 v%d, v%d, v%d' % (LD + 4 * t, LD + 4 * t, LD + 4 * t + 1))
        p('v_cvt_pk_bf16_f32 v%d, v%d, v%d' % (LD + 4 * t + 1, LD + 4 * t + 2, LD + 4 * t + 3))
        p('ds_write_b64 v130, %s offset:%d' % (vr(LD + 4 * t, 2), 64 * t))
    p('s_mov_b64 exec, 1')
    p('ds_add_u32 v22, v23')
    p('s_mov_b64 exec, -1')
    fstamp(p, 2)
    p('L_go:')
    return p.l


def mf(d, a, b, first):
    return Ins('%s %s, %s, %s, %s' % (MF16, d, a, b, '0' if first else d))


def cvt(d, a, b):
    return Ins('v_cvt_pk_bf16_f32 %s, %s, %s' % (d, a, b))


def xred(p, op, a, tag):
    t = VReg('xr' + tag, 1)
    p('v_mov_b32 %s, %s' % (t, a))
    p('v_permlane32_swap_b32 %s, %s' % (a, t))
    p('%s %s, %s, %s' % (op, a, a, t))
    p('v_mov_b32 %s, %s' % (t, a))
    p('v_permlane16_swap_b32 %s, %s' % (a, t))
    p('%s %s, %s, %s' % (op, a, a, t))


def rowred(p, op, d, z):
    p('%s_dpp %s, %s, %s row_ror:8 row_mask:0xf bank_mask:0xf' % (op, d, z, z))
    for k in (4, 2, 1):
        p('%s_dpp %s, %s, %s row_ror:%d row_mask:0xf bank_mask:0xf' % (op, d, d, d, k))


def window(fast, withL, tag):
    V = lambda n, k=4: VReg(tag + n, k)
    XF = [[V('xf%d_%d' % (t, s)) for s in range(3)] for t in range(4)]
    EA = [V('ea%d' % s) for s in range(3)]
    E = [V('e%d' % t) for t in range(4)]
    W1 = [V('mt%d' % k) for k in range(18)]
    W2 = [V('wv%d' % k) for k in range(18)]
    W2s = [[V('wv%d_%d' % (q, k)) for k in range(18)] for q in range(2)] + [W2] if ORDER in 'ef' else [W2] * 3
    if ORDER == 'f':
        W2s[1] = W2
    TB = [[V('tb%d_%d' % (q, s)) for s in range(3)] for q in range(3)]
    S = [[V('s%d_%d' % (q, k)) for k in range(3)] for q in range(3)]
    PB = [[V('pb%d_%d' % (q, k)) for k in range(2)] for q in range(4)]
    XT = [[V('xt%d_%d' % (c, k)) for k in range(2)] for c in range(6)]
    YB = [[V('yb%d_%d' % (q, s)) for s in range(3)] for q in range(3)]
    eL = [V('el%d' % q, 1) for q in range(3)]
    sums = [V('sum%d' % q, 1) for q in range(3)]
    nt = 4 if withL else 3
    ZS = []

    def reads():
        p = Prog()
        for t in range(3):
            for s in range(3):
                p('ds_read_b128 %s, %s offset:%d' % (XF[t][s], aX, 3072 * t + 64 * s))
        for s in range(3):
            p('ds_read_b128 %s, %s offset:%d' % (EA[s], aE, 64 * s))
            if withL:
                p('ds_read_b128 %s, %s offset:%d' % (XF[3][s], aX3, 64 * s))
        for k in range(18):
            p('ds_read_b128 %s, %s offset:%d' % (W1[k], aW, MT + 1024 * k))
        for c in range(6):
            a = aT0 if c % 2 == 0 else aT1
            for kt in range(3):
                p('ds_read_b64_tr_b16 %s, %s offset:%d' % (XT[c][kt >> 1][2 * (kt & 1):2 * (kt & 1) + 2], a,
                                                           3072 * kt + 64 * (c >> 1)))
            p('ds_read_b64_tr_b16 %s, %s offset:%d' % (XT[c][1][2:4], aT3, 32 * c))
        gate = []
        if withL:
            fa, fv = V('fa', 1), V('fv', 1)
            p('v_mov_b32 %s, %d' % (fa, FLG))
            p.l[-1].late = True
            p('ds_read_b32 %s, %s offset:8' % (fv, fa))
            p('v_readfirstlane_b32 s46, %s' % fv)
            p('s_cmp_lt_u32 s46, 4')
            p('s_cbranch_scc1 L_waitW')
            p.l[-1].rset.add(('v', fv.base))
            gate = [p.l[-1]]
            GATE.append((fa, fv))
        seen = []
        for ws in W2s:
            if ws in seen:
                continue
            seen.append(ws)
            for k in range(18):
                p('ds_read_b128 %s, %s offset:%d' % (ws[k], aW, WV + WVJ * (k // 3) + 1024 * (k % 3)))
                p.l[-1].after = gate
                p.l[-1].slack = WSLACK
        return p.l

    def T(qs):
        out = []
        for sp in range(3):
            for x in range(2):
                acc = {q: V('ta%d_%d_%d' % (q, sp, x)) for q in qs}
                for s in range(3):
                    for q in qs:
                        out.append(mf(acc[q], W1[(2 * sp + x) * 3 + s], XF[q][s], s == 0))
                for q in qs:
                    out.append(cvt(TB[q][sp][2 * x], acc[q][0], acc[q][1]))
                    out.append(cvt(TB[q][sp][2 * x + 1], acc[q][2], acc[q][3]))
        return out

    def Emf():
        return [mf(E[t], EA[s], XF[t][s], s == 0) for s in range(3) for t in range(nt)]

    def Lq():
        p = Prog()
        z, m, sm = V('z', 1), V('zm', 1), V('zs', 1)
        p('v_cndmask_b32 %s, %s, %s, s[%d:%d]' % (z, vNINF, E[3][1], sL48, sL48 + 1))
        for t, sg in ((0, sG0), (1, sG1), (2, sG2)):
            p('v_cndmask_b32 %s, %s, %s, s[%d:%d]' % (z, z, E[t][1], sg, sg + 1))
        rowred(p, 'v_max_f32', m, z)
        xred(p, 'v_max_f32', m, tag + 'zm')
        p('v_sub_f32 %s, %s, %s' % (z, z, m))
        p('v_exp_f32 %s, %s' % (z, z))
        rowred(p, 'v_add_f32', sm, z)
        if PAIRZ:
            ZS.extend([z, sm])
            return p.l
        xred(p, 'v_add_f32', sm, tag + 'zs')
        p('v_rcp_f32 %s, %s' % (sm, sm))
        return p.l + Lq2(z, sm)

    def Lq2(z, sm):
        p = Prog()
        p('v_mul_f32 %s, %s, %s' % (z, z, sm))
        p('v_cvt_pk_bf16_f32 %s, %s, %s' % (z, z, z))
        p('ds_write_b16 %s, %s offset:%d' % (aPSw, z, PS - SCR))
        w = p.l[-1]
        p('ds_read2_b64 %s, %s offset0:72 offset1:76' % (PB[3][0], aPSr))
        p.l[-1].after = [w]
        p('ds_read2_b64 %s, %s offset0:80 offset1:84' % (PB[3][1], aPSr))
        p.l[-1].after = [w]
        return p.l

    def keyL():
        return [Ins('v_cndmask_b32 %s, %s, %s, s[%d:%d]' % (eL[q], vNINF, E[q][0], sG0, sG0 + 1)) for q in range(3)]

    def Smf(q):
        return [mf(S[q][k], XF[k][s], TB[q][s], s == 0) for s in range(3) for k in range(3)]

    def soft(q):
        p = Prog()
        v = [S[q][k][r] for k in range(3) for r in range(4)] + [str(eL[q])]
        if not fast:
            m = V('m%d' % q, 1)
            p('v_max3_f32 %s, %s, %s, %s' % (m, v[12], v[0], v[1]))
            for k in range(2, 12, 2):
                p('v_max3_f32 %s, %s, %s, %s' % (m, m, v[k], v[k + 1]))
            xred(p, 'v_max_f32', m, tag + 'm%d' % q)
            for k in range(13):
                p('v_sub_f32 %s, %s, %s' % (v[k], v[k], m))
        order = [12] + list(range(12))
        for k in order:
            p('v_exp_f32 %s, %s' % (v[k], v[k]))
        p('v_add_f32 %s, %s, %s' % (sums[q], v[12], v[0]))
        for k in range(1, 12):
            p('v_add_f32 %s, %s, %s' % (sums[q], sums[q], v[k]))
        rc = V('rc%d' % q, 1)
        if q == 0 and ZS:
            z, zs = ZS
            p('v_permlane32_swap_b32 %s, %s' % (sums[0], zs))
            p('v_add_f32 %s, %s, %s' % (sums[0], sums[0], zs))
            p('v_mov_b32 %s, %s' % (zs, sums[0]))
            p('v_permlane16_swap_b32 %s, %s' % (sums[0], zs))
            p('v_add_f32 %s, %s, %s' % (sums[0], sums[0], zs))
            p('v_rcp_f32 %s, %s' % (rc, sums[0]))
            p('v_mov_b32 %s, %s' % (zs, rc))
            p('v_permlane32_swap_b32 %s, %s' % (rc, zs))
            p.extend(Lq2(z, zs))
        else:
            xred(p, 'v_add_f32', sums[q], tag + 's%d' % q)
            p('v_rcp_f32 %s, %s' % (rc, sums[q]))
        for k in range(6):
            p('v_mul_f32 %s, %s, %s' % (v[2 * k], v[2 * k], rc))
            p('v_mul_f32 %s, %s, %s' % (v[2 * k + 1], v[2 * k + 1], rc))
            p.l.append(cvt(PB[q][k >> 2][k & 3], v[2 * k], v[2 * k + 1]))
        p('v_mul_f32 %s, %s, %s' % (v[12], v[12], rc))
        p.l.append(cvt(PB[q][1][2], v[12], '0'))
        p('v_mov_b32 %s, 0' % PB[q][1][3])
        p.l[-1].after = [p.l[-2]]
        return p.l

    def check():
        p = Prog()
        hi, lo = V('hi', 1), V('lo', 1)
        p('v_max3_u32 %s, %s, %s, %s' % (hi, sums[0], sums[1], sums[2]))
        p('v_min3_u32 %s, %s, %s, %s' % (lo, sums[0], sums[1], sums[2]))
        p('v_cmp_lt_u32 vcc, 0x5f800000, %s' % hi)
        p('s_mov_b64 s[%d:%d], vcc' % (sBAD, sBAD + 1))
        p('v_cmp_gt_u32 vcc, 0x1f800000, %s' % lo)
        p('s_or_b64 s[%d:%d], s[%d:%d], vcc' % (sBAD, sBAD + 1, sBAD, sBAD + 1))
        return p.l

    def Y(q):
        out = []
        for s in range(3):
            acc = [V('ya%d_%d_%d' % (q, s, x)) for x in range(2)]
            for k, x in (((0, 0), (1, 0), (0, 1), (1, 1)) if CHAIN else ((0, 0), (0, 1), (1, 0), (1, 1))):
                out.append(mf(acc[x], XT[2 * s + x][k], PB[q][k], k == 0))
            for r in range(4):
                out.append(cvt(YB[q][s][r], acc[0][r], acc[1][r]))
        return out

    def YLq():
        out = []
        ws = []
        for s in range(3):
            acc = [V('yl%d_%d' % (s, x)) for x in range(2)]
            for k, x in (((0, 0), (1, 0), (0, 1), (1, 1)) if CHAIN else ((0, 0), (0, 1), (1, 0), (1, 1))):
                out.append(mf(acc[x], PB[3][k], XT[2 * s + x][k], k == 0))
            y = V('ylc%d' % s, 1)
            out.append(cvt(y, acc[0][0], acc[1][0]))
            out.append(Ins('ds_write_b32 %s, %s offset:%d' % (aYLw, y, YL - SCR + 64 * s)))
            ws.append(out[-1])
        one = V('one', 1)
        out.append(Ins('v_mov_b32 %s, 1' % one))
        out[-1].after = [ws[0]]
        out.append(Ins('ds_write_b32 %s, %s' % (aFw, one)))
        out[-1].after = ws
        return out

    def O(q):
        out = []
        OB = [V('ob%d_%d' % (q, r)) for r in range(4)]
        for jj in range(3):
            acc = [V('oa%d_%d_%d' % (q, jj, x)) for x in range(2)]
            for s, x in ([(s, x) for x in range(2) for s in range(3)] if CHAIN else
                         [(s, x) for s in range(3) for x in range(2)]):
                out.append(mf(acc[x], YB[q][s], W2s[q][(2 * jj + x) * 3 + s], s == 0))
            for r in range(4):
                out.append(cvt(OB[r][jj], acc[0][r], acc[1][r]))
        for r in range(4):
            T0 = 16 * q + 4 * r
            row0 = T0 // 7
            thr = min(4, 7 * (row0 + 1) - T0)
            out.append(Ins('buffer_store_dwordx3 %s, %s, s[16:19], s%d offen offset:%d %s'
                           % (OB[r][0:3], vS[thr], sROW + row0, 192 * (T0 - 7 * row0), STFLAG)))
        return out

    L = (lambda f: f()) if withL else (lambda f: [])
    seq = reads()
    if ORDER == 'a':
        seq += T([0]) + Emf() + keyL() + L(Lq) + Smf(0) + soft(0) + T([1]) + Smf(1) + soft(1) + T([2]) + Smf(2) + soft(2)
        seq += Y(0) + L(YLq) + Y(1) + Y(2)
    elif ORDER == 'b':
        seq += T([0, 1]) + Emf() + keyL() + L(Lq) + Smf(0) + soft(0) + T([2]) + Smf(1) + soft(1) + Smf(2) + soft(2)
        seq += L(YLq) + Y(0) + Y(1) + Y(2)
    elif ORDER == 'c':
        seq += T([0, 1, 2]) + Emf() + keyL() + L(Lq) + Smf(0) + soft(0) + Smf(1) + soft(1) + Smf(2) + soft(2)
        seq += L(YLq) + Y(0) + Y(1) + Y(2)
    elif ORDER == 'd':
        seq += Emf() + keyL() + L(Lq) + T([0]) + Smf(0) + soft(0) + T([1]) + Smf(1) + soft(1) + T([2]) + Smf(2) + soft(2)
        seq += Y(0) + L(YLq) + Y(1) + Y(2)
    elif ORDER == 'p':
        sf = [None] * 3
        seq += Emf() + keyL() + L(Lq) + T([0]) + Smf(0)
        sf[0] = soft(0)
        seq += sf[0] + T([1]) + Smf(1)
        sf[1] = soft(1)
        seq += sf[1] + T([2]) + Smf(2)
        sf[2] = soft(2)
        seq += sf[2]
        ys = Y(0) + L(YLq) + Y(1) + Y(2)
        need = sf[0] + sf[1]
        k = [n for n, i in enumerate(sf[2]) if i.op == 'v_rcp_f32'][0]
        need += sf[2][:k + 1] if DRAIN == 1 else sf[2] if DRAIN == 2 else sf[2][:13]
        ys[0].after = [i for i in need if i.is_valu()]
        ys[0].phase = True
        seq += ys
    def nmf():
        return sum(1 for i in seq if i.kind == 'mfma') - (3 if withL and PRE else 0)

    def Oq(q):
        o = O(q)
        if NOST:
            o = [i for i in o if i.kind != 'vstore']
        nb = nmf() + 18
        ns = 0
        for i in o:
            if i.kind == 'vstore':
                i.deadline = 4 * nb + STD0 + STGAP * ns
                ns += 1
        return o

    def YLd():
        y = L(YLq)
        for i in y:
            if i.kind == 'ds_write':
                i.deadline = 4 * (nmf() + 12) + 40
        return y

    def CK():
        if not fast:
            return []
        ck = check()
        ck[-1].deadline = 4 * nmf() + 30
        return ck
    if ORDER in 'ef':
        seq += Emf() + keyL() + L(Lq) + T([0]) + Smf(0) + soft(0) + T([1]) + Smf(1) + soft(1) + T([2]) + Smf(2) + soft(2)
        for tok in EORD:
            seq += {'a': lambda: Y(0), 'b': lambda: Y(1), 'c': lambda: Y(2) + CK(), 'l': YLd,
                    '0': lambda: Oq(0), '1': lambda: Oq(1), '2': lambda: Oq(2)}[tok]()
    else:
        nb = nmf()
        for i in seq:
            if i.kind == 'ds_write':
                i.deadline = 4 * nb
        seq += CK()
        for q in range(3):
            seq += Oq(q)
    pre = []
    if withL and PRE:
        early = set(EA) | set(XF[3]) | set(W1[:PRE]) | {E[3]}
        rest = []
        for i in seq:
            wb = {VReg.all[r] for k, r in i.wset if k == 'v' and r >= VBASE}
            (pre if wb and wb <= early else rest).append(i)
        seq = rest
    return pre, seq, W2


def ltail(W2):
    p = Prog()
    YL2 = [VReg('yl2_%d' % s, 4) for s in range(3)]
    f = VReg('fl', 2)
    aFr, aYLr, vOL, t1, t2 = [VReg(n, 1) for n in 'aFr aYLr vOL t1 t2'.split()]
    p('v_add_u32 %s, -8, %s' % (aFr, aFw))
    p('s_mul_i32 s41, s28, %d' % SSTR)
    p('s_add_u32 s41, s41, %d' % YL)
    p('v_and_b32 %s, 48, v0' % t1)
    p('v_bfe_u32 %s, v0, 2, 2' % t2)
    p('v_min_u32 %s, 2, %s' % (t2, t2))
    p('v_mul_u32_u24 %s, %d, %s' % (t2, 4 * SSTR, t2))
    p('v_add3_u32 %s, %s, %s, s41' % (aYLr, t1, t2))
    p('L_poll2:')
    p('ds_read_b64 %s, %s' % (f, aFr))
    for s in range(3):
        p('ds_read_b128 %s, %s offset:%d' % (YL2[s], aYLr, 64 * s))
    p('s_mov_b32 s42, %d' % ((GENJ - 192) // 16))
    p('v_mul_lo_u32 %s, %s, s42' % (vOL, t1))
    p('v_add_u32 %s, %s, %s' % (vOL, vOL, vS[4]))
    p('s_waitcnt lgkmcnt(0)')
    p('v_and_b32 %s, %s, %s' % (f[0], f[0], f[1]))
    p('v_readfirstlane_b32 s40, %s' % f[0])
    p('s_cmp_eq_u32 s40, 0')
    p('s_cbranch_scc1 L_poll2')
    acc = [VReg('ola%d' % j, 4) for j in range(6)]
    ob = VReg('olb', 4)
    for s in range(3):
        for j in range(6):
            p.l.append(mf(acc[j], YL2[s], W2[3 * j + s], s == 0))
    for jj in range(3):
        p.l.append(cvt(ob[jj], acc[2 * jj][0], acc[2 * jj + 1][0]))
    p('buffer_store_dwordx3 %s, %s, s[16:19], s%d offen %s' % (ob[0:3], vOL, sBASE0, STFLAG))
    return p.l


def build():
    pro = prologue()
    pre, seq, W2 = window(FAST, True, 'f')
    main, t = sched.schedule(seq, slack=SLACK, verbose=True)
    pa, pv = VReg('pa', 1), VReg('pv', 1)
    q = Prog()
    q('v_mov_b32 %s, %d' % (pa, FLG))
    q('L_poll1:')
    q('ds_read_b32 %s, %s' % (pv, pa))
    q('s_waitcnt lgkmcnt(0)')
    q('v_readfirstlane_b32 s40, %s' % pv)
    q('s_cmp_lt_u32 s40, 4')
    q('s_cbranch_scc1 L_poll1')
    q.l[-1].rset.add(('v', pa.base))
    q('s_setprio 0')
    pre1 = [i for i in pre if i.kind == 'ds_read' and str(aE) + ' ' not in i.text]
    pre2 = [i for i in pre if i not in pre1]
    if PH:
        k = [n for n, i in enumerate(main) if getattr(i, 'phase', False)][0]
        j = max(n for n in range(k) if main[n].kind == 'mfma')
        main.insert(k, Ins('s_setprio %s' % PH[2]))
        main.insert(j + 1, Ins('s_setprio %s' % PH[1]))
        q.l[-1] = Ins('s_setprio %s' % PH[0])
    if PR2:
        nm = 0
        for k, i in enumerate(main):
            nm += i.kind == 'mfma'
            if nm == PR2:
                main.insert(k + 1, Ins('s_setprio 0'))
                break
        q('s_cmp_lt_u32 s3, 8')
        q('s_cbranch_scc1 L_pr')
        q('s_setprio 1')
        q('L_pr:')
    main = pre1 + q.l + stamp() + pre2 + [Ins('L_page:')] + ([Ins('L_h1:'), Ins('s_cbranch_execz L_hopret')] if WARM else []) + [Ins('s_waitcnt vmcnt(0) lgkmcnt(0)')] + ([Ins('s_barrier')] if SYNC else []) + stamp() + main
    lt = ltail(W2)
    lblocks = set()
    for i in lt:
        lblocks |= blocks_of(i)
    live = {b for b in lblocks if b in PIN or b in W2}
    asg, peak = allocate(main, LO, HI, pre=dict(PIN), liveout=live)
    asgl, pl = allocate(lt, LO, HI, pre={b: asg[b] for b in live}, liveout=lblocks)
    print('peak regs', peak + 1, file=sys.stderr)
    mainr = rewrite(main, asg)
    k = [i for i, x in enumerate(mainr) if x.text.startswith('s_cbranch_scc1 L_waitW')][0]
    mainr.insert(k + 1, Ins('L_backW:'))
    body = pro + mainr
    body += stamp()
    p = Prog()
    p('L_mainend:')
    p('s_cmp_lt_u32 s3, 8')
    p('s_cbranch_scc1 L_noL')
    ltr = rewrite(lt, asgl)
    if WARM:
        ltr = [Ins('L_h3:'), Ins('s_cbranch_execz L_hopret')] + ltr
    body += p.l + ltr
    p = Prog()
    p('L_noL:')
    if FAST:
        if FORCESLOW:
            p('s_branch L_slow')
        else:
            p('s_cmp_lg_u64 s[%d:%d], 0' % (sBAD, sBAD + 1))
            p('s_cbranch_scc1 L_slow')
    p('L_fin:')
    body += p.l

    body += stamp()
    body += stamp_dump()
    body.append(Ins('s_endpgm'))
    fa, fv = GATE[0]
    p = Prog()
    p('L_waitW:')
    p('v_mov_b32 v%d, %d' % (asg[fv], FLG))
    p('ds_read_b32 v%d, v%d offset:8' % (asg[fv], asg[fv]))
    p('s_waitcnt lgkmcnt(0)')
    p('v_readfirstlane_b32 s46, v%d' % asg[fv])
    p('s_cmp_lt_u32 s46, 4')
    p('s_cbranch_scc1 L_waitW')
    p('s_branch L_backW')
    body += p.l
    if FAST:
        p = Prog()
        p('L_slow:')
        p('s_waitcnt vmcnt(0) lgkmcnt(0)')
        p('s_nop 7')
        call(p, 'L_sub_addr')
        _, seq2, _ = window(False, False, 'g')
        slow, _ = sched.schedule(seq2, slack=SLACK)
        asg2, _ = allocate(slow, LO, HI, pre=dict(PIN))
        body += p.l + rewrite(slow, asg2) + [Ins('s_branch L_fin')]
    body = finalize(body)
    hdr = open(os.path.join(os.path.dirname(os.path.abspath(__file__)), 'header.txt')).read()
    s = hdr
    s += '; @launch grid=(%d,1,1) block=(768,1,1) lds=%d\n' % (NWG + NH, LDS)
    s += '.amdgcn_target "amdgcn-amd-amdhsa--gfx950"\n.text\n.p2align 12\nL_anchor:\n.globl %s_kernel\n.p2align 8\n' % NAME
    s += '.type %s_kernel,@function\n%s_kernel:\n' % (NAME, NAME)
    txt = render(body)
    if ALIGN:
        txt = txt.replace('L_pad:\n', 'L_pad:\n.fill ((8192-((L_pad-L_anchor)+(L_page-L_h2))%4096)%4096)/4, 4, 0xbf810000\n')
    s += txt
    s += 'L_end:\n    s_endpgm\n'
    s += '''.section .rodata,"a"
.p2align 6
.amdhsa_kernel %s_kernel
  .amdhsa_next_free_vgpr 168
  .amdhsa_next_free_sgpr 102
  .amdhsa_accum_offset 168
  .amdhsa_group_segment_fixed_size 0
  .amdhsa_kernarg_size 48
  .amdhsa_user_sgpr_count 2
  .amdhsa_user_sgpr_kernarg_segment_ptr 1
  .amdhsa_system_sgpr_workgroup_id_x 1
.end_amdhsa_kernel
''' % NAME
    print('main', stats(finalize(rewrite(main, asg))), 'nstamps', nstamp[0], file=sys.stderr)
    return s


if __name__ == '__main__':
    open(sys.argv[1], 'w').write(build())
```

```python
from asmlib import *

EAGER = 24
OVER = 0
RESERVE = 12
LDS_LAT = 28


def cost(i):
    k = i.kind
    if k in ('trans', 'permlane'):
        return 2
    if k == 'ds_read':
        return 2
    if k == 'ds_write':
        return 6 if 'b128' in i.op else 3
    if k == 'vstore':
        return 5
    if k == 'branch':
        return 3
    return 1


def build_deps(seq):
    lastw, readers = {}, {}
    preds = [set() for _ in seq]
    idx = {id(x): n for n, x in enumerate(seq)}
    for n, i in enumerate(seq):
        for r in i.rset:
            if r == ('exec', 0):
                pass
            if r in lastw:
                preds[n].add(lastw[r])
        for r in i.wset:
            if r in lastw:
                preds[n].add(lastw[r])
            for q in readers.get(r, ()):
                if q != n:
                    preds[n].add(q)
        for r in i.rset:
            readers.setdefault(r, []).append(n)
        for r in i.wset:
            lastw[r] = n
            readers[r] = []
        for a in getattr(i, 'after', ()):
            if id(a) in idx:
                preds[n].add(idx[id(a)])
    return preds


def lat(p, c):
    if p.kind == 'ds_read' and p.wset & (c.rset | c.wset):
        return LDS_LAT
    d = required_distance(p, c)
    if p.kind == 'mfma' and c.kind == 'mfma' and d == 0:
        return 4
    return max(cost(p), d + 1)


def schedule(seq, slack=16, verbose=False, prefix=(), limit=None, live0=(), liveout=(), rnd=None, noise=0):
    n = len(seq)
    preds = build_deps(seq)
    succs = [[] for _ in seq]
    for c in range(n):
        for p in preds[c]:
            succs[p].append(c)
    backbone = [k for k in range(n) if seq[k].kind == 'mfma']
    pos = {k: j for j, k in enumerate(backbone)}
    end = 4 * len(backbone) + 12
    LS = [None] * n
    for k in reversed(range(n)):
        v = 4 * pos[k] if k in pos else getattr(seq[k], 'deadline', end)
        if seq[k].op.startswith('v_cvt_pk'):
            pm = [pos[q] for q in preds[k] if q in pos and seq[q].wset & seq[k].rset]
            if pm:
                v = min(v, 4 * max(pm) + EAGER)
        for s in succs[k]:
            v = min(v, LS[s] - lat(seq[k], seq[s]))
        LS[k] = v
    if rnd is not None and noise:
        off = {}
        for k in range(n):
            key = (seq[k].kind, seq[k].op, LS[k] // 24)
            if key not in off:
                off[key] = rnd.uniform(-noise, noise)
            if k not in pos:
                LS[k] += off[key]
    blk = [blocks_of(i) for i in seq]
    remaining = {}
    for b in blk:
        for x in b:
            remaining[x] = remaining.get(x, 0) + 1
    live = {x for x in live0 if x in remaining or x in liveout}
    dying = []
    nlive = [sum(x.n for x in live)]

    def newregs(k):
        return sum(x.n for x in blk[k] if x not in live)

    def fits(k, reserve=0):
        if limit is None:
            return True
        nr = newregs(k)
        return nr == 0 or nlive[0] + nr + reserve <= limit
    done = [False] * n
    npred = [len(p) for p in preds]
    out = list(prefix)
    nprefix = len(out)
    t = 0
    pipe_free = valu_free = 0
    issue_t = {}
    lgq = []
    bi = 0
    avail = {k for k in range(n) if npred[k] == 0}
    stalls = 0

    def hazard_short(i):
        dist, short = 0, 0
        for p in reversed(out[-24:]):
            r = required_distance(p, i)
            if r > dist:
                short = max(short, r - dist)
            dist += p.states()
        return short

    def unwaited(i):
        touch = i.rset | i.wset
        last = -1
        for j, (q, _) in enumerate(lgq):
            if seq[q].wset & touch:
                last = j
        return last

    def emit_wait(upto):
        nonlocal lgq, t
        j = upto
        while j + 1 < len(lgq) and lgq[j + 1][1] + LDS_LAT <= t:
            j += 1
        left = min(len(lgq) - 1 - j, 15)
        j = len(lgq) - 1 - left
        t = max(t + 1, lgq[upto][1] + LDS_LAT)
        out.append(Ins('s_waitcnt lgkmcnt(%d)' % left))
        lgq = lgq[j + 1:]

    def emit(k):
        nonlocal t, pipe_free, valu_free, bi
        i = seq[k]
        if i.kind == 'mfma':
            t = max(t, pipe_free)
            pipe_free = t + 4
            valu_free = t + 2
            bi += 1
        elif i.is_valu():
            t = max(t, valu_free)
        c = cost(i)
        if i.kind == 'ds_read' and out and out[-1].is_valu():
            c += 1
        issue_t[k] = t
        if i.kind in ('ds_read', 'ds_write'):
            lgq.append((k, t))
        t += c
        out.append(i)
        for x in blk[k]:
            if x not in live:
                live.add(x)
                nlive[0] += x.n
            remaining[x] -= 1
            if remaining[x] == 0 and x not in liveout:
                dying.append((len(out) + (6 if i.kind == 'mfma' else 0), x))
        done[k] = True
        avail.discard(k)
        for s in succs[k]:
            npred[s] -= 1
            if npred[s] == 0:
                avail.add(s)

    def data_ready(k):
        u = unwaited(seq[k])
        return u < 0 or lgq[u][1] + LDS_LAT <= t

    def released(k):
        i = seq[k]
        clock = 4 * bi
        if i.kind == 'ds_read':
            return clock >= LS[k] - getattr(i, 'slack', slack) and len(lgq) < 15
        if getattr(i, 'late', False):
            return clock >= LS[k] - slack
        return clock >= getattr(i, 'release', -10 ** 9)

    while not all(done):
        for d in [d for d in dying if d[0] <= len(out)]:
            dying.remove(d)
            nlive[0] -= d[1].n
        nxt = backbone[bi] if bi < len(backbone) else None
        m_ok = nxt is not None and nxt in avail and hazard_short(seq[nxt]) == 0 and fits(nxt, 4)
        shadow = out and out[-1].kind == 'mfma'
        if shadow:
            did = False
            for look in backbone[bi:bi + 2]:
                u = unwaited(seq[look])
                if u >= 0 and lgq[u][1] + LDS_LAT <= t + 2:
                    emit_wait(u)
                    did = True
                    break
            if did:
                continue
        fill = [k for k in avail if seq[k].kind != 'mfma' and released(k) and hazard_short(seq[k]) == 0
                and data_ready(k) and fits(k, RESERVE if seq[k].kind == 'ds_read' else 0)]
        fill.sort(key=lambda k: (LS[k], k))
        room = pipe_free - t
        if m_ok and unwaited(seq[nxt]) < 0 and room <= 0:
            emit(nxt)
            continue
        pick = None
        mready = m_ok and data_ready(nxt)
        for k in fill:
            i = seq[k]
            c = cost(i)
            start = max(t, valu_free) if i.is_valu() else t
            if i.kind == 'ds_read' and out and out[-1].is_valu():
                c += 1
            if unwaited(i) >= 0:
                c += 1
            if not mready or start + c <= pipe_free:
                pick = k
                break
            if shadow and c > 3 and LS[k] <= 4 * bi + 8:
                pick = k
                break
        if pick is None and mready and OVER:
            for k in fill:
                i = seq[k]
                if i.is_valu() and unwaited(i) < 0:
                    start = max(t, valu_free)
                    if start < pipe_free and start + cost(i) <= pipe_free + 1 and LS[k] <= 4 * bi + OVER:
                        pick = k
                        break
        if shadow and mready:
            for k in fill:
                i = seq[k]
                if not i.is_valu() and cost(i) <= 3 and unwaited(i) < 0:
                    pick = k
                    break
        if pick is not None:
            u = unwaited(seq[pick])
            if u >= 0:
                emit_wait(u)
            emit(pick)
            continue
        if m_ok:
            u = unwaited(seq[nxt])
            if u >= 0:
                emit_wait(u)
            emit(nxt)
            continue
        cand = [k for k in avail if seq[k].kind != 'mfma' or k == nxt]
        cand.sort(key=lambda k: (not fits(k), LS[k], k))
        if cand and not fits(cand[0]) and dying:
            out.append(Ins('s_nop 0'))
            t += 1
            stalls += 1
            continue
        prog = False
        for k in cand:
            if not fits(k) and fits(cand[0]):
                continue
            if hazard_short(seq[k]) == 0 and (seq[k].kind != 'ds_read' or len(lgq) < 15) and data_ready(k):
                u = unwaited(seq[k])
                if u >= 0:
                    emit_wait(u)
                emit(k)
                prog = True
                break
        if prog:
            continue
        hz = [k for k in cand if hazard_short(seq[k]) > 0 and data_ready(k)]
        if hz:
            out.append(Ins('s_nop 0'))
            t += 1
            stalls += 1
            continue
        k = cand[0]
        u = unwaited(seq[k])
        if u < 0:
            u = 0
        emit_wait(u)
    res = []
    for i in out[nprefix:]:
        if i.kind == 'nop' and res and res[-1].kind == 'nop' and res[-1].n + i.n <= 16:
            res[-1] = Ins('s_nop %d' % (res[-1].n + i.n - 1))
        else:
            res.append(i)
    if verbose:
        print('schedule: %d slots (%d cycles), %d mfma, nop states %d' % (t, 4 * t, len(backbone), stalls),
              file=__import__('sys').stderr)
    return res, t
```

```python
import sys, struct, math, os
sys.path.insert(0, os.path.dirname(os.path.abspath(__file__)))
from asmlib import *
import sched

NAME = 'standalone__swin_window_attn__vision'
XBYTES = 27433728
NWG = 243
MT, WV = 0, 18432
WVJ = 3072 + 48
XBUF0, XSTR = 37248, 9216
RAWM = XBUF0 + 4 * XSTR
RAWV = XBUF0 + 8 * XSTR
RAWO = RAWV + 18432
SCR = XBUF0 + 12 * XSTR
SSTR = 720
UT, YL, PS = SCR, SCR + 384, SCR + 576
XLT = SCR + 12 * SSTR
FLG = XLT + 2304
LDS = FLG + 128
ROWS = 72576
ROWJ = ROWS - 1344
GENJ = 18 * 508032
LOFF = 6 * ROWS + 6 * 192

opts = dict(a.split('=', 1) for a in sys.argv[2:] if '=' in a)
LDFLAG = opts.get('ld', '').replace('+', ' ')
STFLAG = opts.get('st', 'sc1').replace('+', ' ')
STAMP = int(opts.get('stamp', '0'))
AMP = int(opts.get('amp', '-1'))
AMPGEN = int(opts.get('ampgen', '-1'))
FAST = int(opts.get('fast', '1'))
FORCESLOW = int(opts.get('forceslow', '0'))
LONE = int(opts.get('lone', '0'))
SLACK = int(opts.get('slack', '16'))
ORDER = opts.get('order', 'd')
PREFETCH = int(opts.get('pf', '0'))
XSPLIT = int(opts.get('xsplit', '6'))
FWPRIO = int(opts.get('fwprio', '3'))
PRIO0 = int(opts.get('prio0', '0'))
NH = int(opts.get('nh', '8'))
XLTLATE = int(opts.get('xltlate', '0'))
PRE = int(opts.get('pre', '18'))
PSLEEP = int(opts.get('psleep', '0'))
P_L1 = int(opts.get('pl1', '3'))
P_FW = int(opts.get('pfw', '3'))
X1GATE = int(opts.get('x1gate', '0'))
ALIGN = int(opts.get('align', '1'))
PR2 = int(opts.get('pr2', '0'))
CHAIN = int(opts.get('chain', '1'))
STD0 = int(opts.get('std0', '20'))
STGAP = int(opts.get('stgap', '12'))
WARM = int(opts.get('warm', '1'))
PAIRZ = int(opts.get('pairz', '1')) and not int(opts.get('msum', '0'))
PH = opts.get('ph', '')
DRAIN = int(opts.get('drain', '1'))
XLTL = int(opts.get('xltl', '0'))
EORD = opts.get('eord', 'al0b1c2')
WSLACK = int(opts.get('wslack', '16'))
USEGATE = 1
PREW = int(opts.get('prew', '6'))
MSUM = int(opts.get('msum', '0'))
YLAG = int(opts.get('ylag', '60'))
XSLACK = int(opts.get('xslack', '16'))
XT0 = int(opts.get('xt0', '0'))
XTD = int(opts.get('xtd', '4'))
WV0 = int(opts.get('wv0', '0'))
WVD = int(opts.get('wvd', '8'))
LIMIT = int(opts.get('limit', '160'))
TRIES = int(opts.get('tries', '1'))
SEED0 = int(opts.get('seed', '0'))
NOISE = float(opts.get('noise', '12'))
sched.RESERVE = int(opts.get('reserve', '12'))
PLAN = opts.get('plan', 'e,t0,s0,t1,s1,t2,s2,a,l,b,c,0,1,2')
B0 = int(opts.get('b0', '0'))
SYNC = int(opts.get('sync', '0'))
NOST = int(opts.get('nost', '0'))
P_FM = int(opts.get('pfm', '3'))
sched.LDS_LAT = int(opts.get('ldslat', '28'))
sched.EAGER = int(opts.get('eager', '24'))
sched.OVER = int(opts.get('over', '0'))

FMT = 8 if XLTL else 4
cscale = (96.0 ** -0.5) * math.log2(math.e)
CS_HEX = '0x%08x' % struct.unpack('<I', struct.pack('<f', cscale))[0]
for idx in range(2916):
    assert (idx * 1214) >> 16 == idx // 54
for e in range(96):
    assert (e * 43) >> 8 == e // 6

MF16 = 'v_mfma_f32_16x16x32_bf16'

PIN = {}


def pin(name, r):
    v = VReg(name, 1)
    PIN[v] = r
    v.ph = r
    return v


aW, aT0, aT1, aT3, aYLw, aFw, aPSr, aX, aX3, aE, aPSw, vNINF = [
    pin(n, k + 5) for k, n in enumerate('aW aT0 aT1 aT3 aYLw aFw aPSr aX aX3 aE aPSw vNINF'.split())]
vS = {k: pin('vS%d' % k, k) for k in (1, 2, 3, 4)}
LO, HI = 1, 167
L16 = 19
XOFF = 152
XL = 140
sBUF, sBASE0 = 60, 61
sROW = 30
sG0, sG1, sG2, sL48, sBAD = 50, 52, 54, 56, 58

nstamp = [0]
GATE = []
NHOP = []


def vr(b, n=4):
    return 'v[%d:%d]' % (b, b + n - 1)


def stamp(real=False):
    if not STAMP and AMP < 0:
        return []
    k = nstamp[0]
    nstamp[0] += 1
    p = Prog()
    if AMP >= 0:
        if k == 0 or k == AMP:
            p('s_memrealtime s[%d:%d]' % ((64, 65) if k == 0 else (68, 69)))
            p('s_waitcnt lgkmcnt(0)')
        return p.l
    p('%s s[%d:%d]' % ('s_memrealtime' if (real or STAMP == 3) else 's_memtime', 64 + 2 * k, 65 + 2 * k))
    p('s_waitcnt lgkmcnt(0)')
    return p.l


def fstamp(p, k):
    if STAMP != 2:
        return
    p('s_memtime s[%d:%d]' % (88 + 2 * k, 89 + 2 * k))
    p('s_waitcnt lgkmcnt(0)')


def stamp_dump():
    p = Prog()
    if AMP >= 0:
        p('s_waitcnt vmcnt(0)')
        p.extend(stamp())
        p('s_sub_u32 s68, s68, s64')
        p('s_mul_i32 s68, s68, 10')
        if AMPGEN >= 0:
            p('s_cmp_eq_u32 s29, %d' % AMPGEN)
            p('s_cselect_b32 s68, s68, 0')
        p('s_add_u32 s68, s68, 4000')
        p('s_min_u32 s68, s68, 40000')
        p('L_spin:')
        p('s_memrealtime s[66:67]')
        p('s_waitcnt lgkmcnt(0)')
        p('s_sub_u32 s66, s66, s64')
        p('s_cmp_lt_u32 s66, s68')
        p('s_cbranch_scc1 L_spin')
        return p.l
    if not STAMP:
        return []
    p('s_waitcnt vmcnt(0)')
    p.extend(stamp())
    p.extend(stamp(True))
    p('s_load_dwordx2 s[4:5], s[0:1], 40')
    p('s_mul_i32 s6, s2, 12')
    p('s_add_u32 s6, s6, s3')
    p('s_lshl_b32 s8, s6, 7')
    p('s_mov_b32 s6, 0x1000000')
    p('s_mov_b32 s7, 0x20000')
    p('s_getreg_b32 s9, hwreg(HW_REG_HW_ID)')
    p('s_getreg_b32 s10, hwreg(HW_REG_XCC_ID)')
    p('s_waitcnt lgkmcnt(0)')
    p('s_mov_b64 exec, 1')
    p('v_mov_b32 v1, 0')
    for k in range(nstamp[0]):
        p('v_mov_b32 v2, s%d' % (64 + 2 * k))
        p('buffer_store_dword v2, v1, s[4:7], s8 offen offset:%d' % (4 * k))
    if STAMP == 2:
        for k in range(6):
            p('v_mov_b32 v2, s%d' % (88 + 2 * k))
            p('buffer_store_dword v2, v1, s[4:7], s8 offen offset:%d' % (64 + 4 * k))
    p('v_mov_b32 v2, s9')
    p('buffer_store_dword v2, v1, s[4:7], s8 offen offset:120')
    p('v_mov_b32 v2, s10')
    p('buffer_store_dword v2, v1, s[4:7], s8 offen offset:124')
    return p.l


def x_dma(p, lo=0, hi=9):
    for n in range(lo, hi):
        r0 = (64 * n) // 84
        if n % 4 == 0 or n == lo:
            p('s_add_u32 s40, s%d, %d' % (sBUF, 1024 * (n & ~3)))
            p('s_mov_b32 m0, s40')
        p('s_add_u32 s41, s%d, %d' % (sROW, 1024 * (n & ~3) + ROWJ * r0))
        p('buffer_load_dwordx4 v%d, s[12:15], s41 offen offset:%d %s lds' % (XOFF + n, 1024 * (n & 3), LDFLAG))


def win_base(p):
    p('s_mov_b32 s14, %d' % XBYTES)
    p('s_mov_b32 s15, 0x20000')
    p('s_lshl_b32 s40, s2, 2')
    p('s_add_u32 s40, s40, s28')
    p('s_mul_i32 s41, s40, 1214')
    p('s_lshr_b32 s41, s41, 16')
    p('s_mul_i32 s41, s41, 435456')
    p('s_mul_i32 s40, s40, 1344')
    p('s_add_u32 s%d, s40, s41' % sBASE0)
    p('s_mul_i32 s40, s29, %d' % GENJ)
    p('s_add_u32 s%d, s40, s%d' % (sROW, sBASE0))
    p('s_add_u32 s%d, s%d, %d' % (sBASE0, sBASE0, LOFF))
    p('s_mul_i32 s%d, s3, %d' % (sBUF, XSTR))
    p('s_add_u32 s%d, s%d, %d' % (sBUF, sBUF, XBUF0))


def count(p, off, t):
    p('v_mov_b32 v%d, %d' % (t, FLG))
    p('v_mov_b32 v%d, 1' % (t + 1))
    p('s_mov_b64 exec, 1')
    p('ds_add_u32 v%d, v%d offset:%d' % (t, t + 1, off))
    p('s_mov_b64 exec, -1')


def poll(p, off, target, label, t):
    p('v_mov_b32 v%d, %d' % (t, FLG))
    p('%s:' % label)
    if PSLEEP:
        p('s_sleep %d' % PSLEEP)
    p('ds_read_b32 v%d, v%d offset:%d' % (t + 1, t, off))
    p('s_waitcnt lgkmcnt(0)')
    p('v_readfirstlane_b32 s40, v%d' % (t + 1))
    p('s_cmp_lt_u32 s40, %d' % target)
    p('s_cbranch_scc1 %s' % label)


def img_addr(p, d, t):
    p('v_lshrrev_b32 v%d, 2, v0' % t)
    p('v_bitop3_b32 v%d, v%d, 8, v0 bitop3:0x6a' % (t, t))
    p('v_lshlrev_b32 v%d, 4, v%d' % (d, t))


def x_offsets(p, t):
    sw = [XOFF, XOFF + 4, XOFF + 8]
    p('v_lshrrev_b32 v%d, 4, v0' % t)
    p('v_mul_u32_u24 v%d, 43, v%d' % (t, t))
    p('s_mov_b32 s41, 0x30')
    for m in range(3):
        if m:
            p('v_add_u32 v%d, %d, v%d' % (t + 1, 4 * m * 43, t))
            p('v_lshrrev_b32 v%d, 3, v%d' % (t + 1, t + 1))
        else:
            p('v_lshrrev_b32 v%d, 3, v%d' % (t + 1, t))
        p('v_bitop3_b32 v%d, v%d, s41, v%d bitop3:0x6a' % (sw[m], t + 1, L16))
        p('v_add_u32 v%d, 0x%x, v%d' % (t + 2 + m, ROWJ, sw[m]))
    for n in range(9):
        r0 = (64 * n) // 84
        thr = 84 * (r0 + 1) - 64 * n
        if thr >= 64:
            assert XOFF + n == sw[n % 3]
        else:
            p('s_lshl_b64 s[42:43], -1, %d' % thr)
            p('v_cndmask_b32 v%d, v%d, v%d, s[42:43]' % (XOFF + n, sw[n % 3], t + 2 + n % 3))


def main_addresses(p, t):
    i, g, a, b, c = t, t + 1, t + 2, t + 3, t + 4
    p('v_and_b32 v%d, 15, v0' % i)
    p('v_lshrrev_b32 v%d, 4, v0' % g)
    img_addr(p, aW.ph, a)
    p('s_movk_i32 s40, 192')
    p('v_and_b32 v%d, 3, v0' % a)
    p('v_bfe_u32 v%d, v0, 2, 2' % b)
    p('v_lshl_add_u32 v%d, v%d, 2, v%d' % (c, a, b))
    p('v_xor_b32 v%d, v%d, v%d' % (aX.ph, g, a))
    p('v_lshl_add_u32 v%d, v%d, 4, s%d' % (aX.ph, aX.ph, sBUF))
    p('v_mad_u32_u24 v%d, v%d, s40, v%d' % (aX.ph, c, aX.ph))
    p('s_mul_i32 s41, s28, 576')
    p('s_mul_i32 s42, s29, 192')
    p('s_add_u32 s41, s41, s42')
    p('s_add_u32 s41, s41, %d' % XLT)
    p('v_lshl_add_u32 v%d, v%d, 4, s41' % (aX3.ph, g))
    p('v_lshl_add_u32 v%d, v%d, 3, s41' % (aT3.ph, a))
    p('v_lshlrev_b32 v%d, 1, v%d' % (c, b))
    p('v_xor_b32 v%d, v%d, v%d' % (c, c, a))
    p('v_lshl_add_u32 v%d, v%d, 3, s%d' % (aT0.ph, c, sBUF))
    p('v_lshl_add_u32 v%d, v%d, 2, v%d' % (c, b, g))
    p('v_mad_u32_u24 v%d, v%d, s40, v%d' % (aT0.ph, c, aT0.ph))
    p('v_xor_b32 v%d, 32, v%d' % (aT1.ph, aT0.ph))
    p('s_mul_i32 s41, s3, %d' % SSTR)
    p('s_add_u32 s41, s41, %d' % SCR)
    p('v_lshl_add_u32 v%d, v%d, 4, s41' % (aE.ph, g))
    p('v_and_b32 v%d, 1, v0' % c)
    p('v_mad_u32_u24 v%d, v%d, s40, v%d' % (aE.ph, c, aE.ph))
    p('v_lshl_add_u32 v%d, v0, 1, s41' % aPSw.ph)
    p('v_lshl_add_u32 v%d, v%d, 3, s41' % (aPSr.ph, g))
    p('v_lshl_add_u32 v%d, v%d, 2, s41' % (aYLw.ph, i))
    p('s_lshl_b32 s41, s28, 4')
    p('s_lshl_b32 s42, s29, 2')
    p('s_add_u32 s41, s41, s42')
    p('s_add_u32 s41, s41, %d' % (FLG + 16))
    p('v_mov_b32 v%d, s41' % aFw.ph)
    p('v_mov_b32 v%d, 0xff800000' % vNINF.ph)
    p('v_mul_u32_u24 v%d, 12, v%d' % (c, i))
    p('v_mad_u32_u24 v%d, v%d, s40, v%d' % (vS[4].ph, g, c))
    p('v_add_u32 v%d, 0x%x, v%d' % (c, ROWJ, vS[4].ph))
    for thr in (1, 2, 3):
        p('s_lshl_b64 s[42:43], -1, %d' % (16 * thr))
        p('v_cndmask_b32 v%d, v%d, v%d, s[42:43]' % (vS[thr].ph, vS[4].ph, c))
    for k in range(1, 7):
        p('s_add_u32 s%d, s%d, %d' % (sROW + k, sROW, ROWS * k))
    p('s_mov_b32 s16, s10')
    p('s_mov_b32 s17, s11')
    p('s_mov_b32 s18, %d' % XBYTES)
    p('s_mov_b32 s19, 0x20000')
    p('s_mov_b64 s[%d:%d], 0xffff' % (sG0, sG0 + 1))
    p('s_lshl_b64 s[%d:%d], s[%d:%d], 16' % (sG1, sG1 + 1, sG0, sG0 + 1))
    p('s_lshl_b64 s[%d:%d], s[%d:%d], 32' % (sG2, sG2 + 1, sG0, sG0 + 1))
    p('s_lshl_b64 s[%d:%d], 1, 48' % (sL48, sL48 + 1))


def fold_body(rdA, rdB, post, tag):
    A = [[VReg('%sa%d%d' % (tag, a, k), 4) for k in range(3)] for a in range(3)]
    B = [[VReg('%sb%d%d' % (tag, a, k), 4) for k in range(3)] for a in range(3)]
    seq = []
    for kind, a in (('A', 0), ('B', 0), ('B', 1), ('A', 1), ('B', 2), ('A', 2)):
        for ks in range(3):
            seq += rdA(a, ks, A[a][ks]) if kind == 'A' else rdB(a, ks, B[a][ks])
    for i in seq:
        i.slack = 1000
    nb = 0
    for a, t in ((0, 0), (0, 1), (1, 0), (1, 1), (0, 2), (1, 2), (2, 0), (2, 1), (2, 2)):
        acc = VReg('%sd%d%d' % (tag, a, t), 4)
        for ks in range(3):
            seq.append(mf(acc, A[a][ks], B[t][ks], ks == 0))
        nb += 3
        l = post(a, t, acc)
        l[-1].deadline = 4 * nb + 24
        seq += l
    save = sched.LDS_LAT
    sched.LDS_LAT = 24
    out, t = sched.schedule(seq, verbose=True)
    sched.LDS_LAT = save
    asg, _ = allocate(out, 28, 127)
    return rewrite(out, asg)


def call(p, label):
    p('s_call_b64 s[62:63], %s' % label)


def prologue():
    p = Prog()
    W = L16
    p('L_start:')
    p.extend(stamp(True))
    p.extend(stamp())
    p('s_load_dwordx4 s[4:7], s[0:1], 0')
    p('s_load_dwordx4 s[8:11], s[0:1], 16')
    p('s_sub_u32 s2, s2, %d' % NH)
    p('s_cmp_ge_u32 s2, %d' % NWG)
    p('s_cbranch_scc1 L_help')
    p('v_lshrrev_b32 v20, 6, v0')
    p('v_readfirstlane_b32 s3, v20')
    p('v_and_b32 v0, 63, v0')
    p('v_lshlrev_b32 v%d, 4, v0' % W)
    p('s_and_b32 s28, s3, 3')
    p('s_lshr_b32 s29, s3, 2')
    p('s_cmp_eq_u32 s29, 0')
    p('s_cbranch_scc1 L_gen0')
    p('s_cmp_eq_u32 s29, 2')
    p('s_cbranch_scc1 L_gen2')
    k0 = nstamp[0]
    p('s_setprio 3')
    p('v_lshrrev_b32 v22, 3, v0')
    p('v_mul_u32_u24 v22, 43, v22')
    p('s_lshl_b32 s40, s28, 5')
    p('s_and_b32 s40, s40, 32')
    p('v_xor_b32 v23, s40, v%d' % W)
    p('s_movk_i32 s41, 64')
    p('s_movk_i32 s42, 192')
    for m in range(3):
        if m:
            p('v_add_u32 v22, 344, v22')
        p('v_lshrrev_b32 v27, 2, v22')
        p('v_lshrrev_b32 v28, 7, v22')
        p('v_bitop3_b32 v27, v27, s41, v23 bitop3:0x6a')
        p('v_mad_u32_u24 v%d, v28, s42, v27' % (24 + m))
    p('s_mov_b32 s22, 55296')
    p('s_mov_b32 s23, 0x20000')
    p('s_mul_i32 s43, s28, 4608')
    p('s_mul_i32 s44, s28, 3072')
    p('s_add_u32 s44, s44, %d' % RAWM)
    p('s_mov_b32 m0, s44')
    for G in (1, 2):
        p('s_add_u32 s%d, s43, %d' % (43 + 2 * G, 18432 * G))
        p('s_add_u32 s%d, s44, %d' % (44 + 2 * G, 12288 * G))
    win_base(p)
    p('v_lshrrev_b32 v22, 2, v0')
    p('v_mul_u32_u24 v22, 43, v22')
    p('v_lshrrev_b32 v22, 7, v22')
    p('s_mov_b32 s41, %d' % (GENJ - 192))
    p('v_mad_u32_u24 v145, v22, s41, v%d' % W)
    p('s_mul_i32 s49, s28, 576')
    p('s_add_u32 s49, s49, %d' % XLT)
    p('s_waitcnt lgkmcnt(0)')
    p('s_mov_b32 s20, s6')
    p('s_mov_b32 s21, s7')
    for G in range(3):
        if G:
            p('s_mov_b32 m0, s%d' % (44 + 2 * G))
        for m in range(3):
            p('buffer_load_dwordx4 v%d, s[20:23], s%d offen offset:%d lds' % (24 + m, 43 + 2 * G, 1024 * m))
    p('s_mov_b32 m0, s49')
    p('s_mov_b32 s12, s4')
    p('s_mov_b32 s13, s5')
    p('s_bfm_b64 exec, 36, 0')
    p('buffer_load_dwordx4 v145, s[12:15], s%d offen lds' % sBASE0)
    p('s_mov_b64 exec, -1')
    fstamp(p, 0)
    if B0:
        p('s_barrier')
    p('s_branch L_gen1b')
    p('L_gen0:')
    p('s_setprio 1')
    win_base(p)
    p('s_getpc_b64 s[62:63]')
    p('L_pc0:')
    p('s_add_u32 s62, s62, L_g0x-L_pc0')
    p('s_addc_u32 s63, s63, 0')
    p('s_waitcnt lgkmcnt(0)')
    p('s_mov_b32 s12, s4')
    p('s_mov_b32 s13, s5')
    p('L_sub_xoff:')
    x_offsets(p, 22)
    p('s_setpc_b64 s[62:63]')
    p('L_g0x:')
    p('s_add_u32 s62, s62, L_gen0b-L_g0x')
    p('s_addc_u32 s63, s63, 0')
    fstamp(p, 0)
    if B0:
        p('s_barrier')
    p('L_sub_xdma:')
    x_dma(p, 0, XSPLIT)
    p('s_setpc_b64 s[62:63]')
    p('L_gen2:')
    if B0:
        p('s_barrier')
    if WARM:
        p('s_mov_b64 exec, 0')
        p('s_cmp_eq_u32 s28, 0')
        p('s_cbranch_scc1 L_h0')
        p('s_cmp_eq_u32 s28, 1')
        p('s_cbranch_scc1 L_h1')
        p('s_cmp_eq_u32 s28, 2')
        p('s_cbranch_scc1 L_h2')
        p('s_branch L_h3')
        p('L_hopret:')
        p('s_mov_b64 exec, -1')
    p('s_branch L_gen2b')
    p('L_help:')
    if NH:
        p('s_cmp_lt_u32 s2, %d' % (0x100000000 - NH))
        p('s_cbranch_scc1 L_end')
    else:
        p('s_endpgm')
    if NH:
        p('s_getpc_b64 s[44:45]')
        p('L_pch:')
        p('s_sub_u32 s44, s44, L_pch-L_start')
        p('s_subb_u32 s45, s45, 0')
        p('v_lshlrev_b32 v1, 7, v0')
        p('v_min_u32 v24, L_fin-L_start, v1')
        p('v_mov_b32 v25, s45')
        p('v_add_co_u32 v24, vcc, s44, v24')
        p('v_addc_co_u32 v25, vcc, 0, v25, vcc')
        p('global_load_dword v26, v[24:25], off')
        p('s_mov_b32 s22, 55296')
        p('s_mov_b32 s23, 0x20000')
        p('s_movk_i32 s26, 18432')
        p('s_mov_b32 s27, 0x20000')
        p('v_subrev_u32 v2, %d, v1' % (448 * 128))
        p('s_waitcnt lgkmcnt(0)')
        p('s_mov_b32 s20, s6')
        p('s_mov_b32 s21, s7')
        p('s_mov_b32 s24, s8')
        p('s_mov_b32 s25, s9')
        p('buffer_load_dword v27, v1, s[20:23], 0 offen')
        p('buffer_load_dword v28, v2, s[24:27], 0 offen')
        p('s_endpgm')
    p('L_gen1b:')
    AE, AO, BE, BO, FD = 128, 129, 130, 131, 132
    p('s_and_b32 s44, s28, 1')
    p('s_lshr_b32 s45, s28, 1')
    p('v_lshrrev_b32 v21, 4, v0')
    p('v_and_b32 v22, 3, v0')
    p('v_bfe_u32 v23, v0, 2, 2')
    p('v_lshl_add_u32 v22, v23, 3, v22')
    p('v_lshlrev_b32 v23, 1, v23')
    p('v_and_b32 v23, 2, v23')
    p('v_xor_b32 v23, v23, v21')
    p('v_lshlrev_b32 v23, 4, v23')
    p('s_movk_i32 s40, 384')
    p('v_mad_u32_u24 v22, v22, s40, v23')
    p('v_and_b32 v23, 2, v0')
    p('v_lshlrev_b32 v23, 5, v23')
    p('v_add_u32 v24, v22, v23')
    p('v_sub_u32 v25, v22, v23')
    p('s_mul_i32 s46, s44, 1536')
    p('s_add_u32 s46, s46, %d' % RAWM)
    p('v_add_u32 v%d, s46, v24' % AE)
    p('v_add_u32 v%d, s46, v25' % AO)
    p('s_mul_i32 s46, s45, 1536')
    p('s_add_u32 s46, s46, %d' % RAWM)
    p('v_add_u32 v%d, s46, v24' % BE)
    p('v_add_u32 v%d, s46, v25' % BO)
    p('s_mul_i32 s46, s45, 3072')
    p('s_lshl_b32 s47, s44, 3')
    p('s_add_u32 s46, s46, s47')
    img_addr(p, 22, 22)
    p('v_add_u32 v%d, s46, v22' % FD)
    p('s_mov_b32 s49, %s' % CS_HEX)
    p('s_setprio 0')
    call(p, 'L_sub_xoff')
    p('s_setprio %d' % P_FM)
    p('s_waitcnt vmcnt(1)')
    p.extend(stamp())
    p('s_barrier')
    p.extend(stamp())

    def postM(a, t, acc):
        q = Prog()
        for k in range(4):
            q('v_mul_f32 %s, s49, %s' % (acc[k], acc[k]))
        q.l.append(cvt(acc[0], acc[0], acc[1]))
        q.l.append(cvt(acc[1], acc[2], acc[3]))
        q('ds_write_b64 v%d, %s offset:%d' % (FD, acc[0:2], 6144 * t + 1024 * a))
        return q.l
    p.extend(fold_body(
        lambda a, ks, r: [Ins('ds_read_b128 %s, v%d offset:%d' % (r, AO if ks & 1 else AE, 12288 * a + 64 * ks))],
        lambda t, ks, r: [Ins('ds_read_b128 %s, v%d offset:%d' % (r, BE if ks & 1 else BO, 12288 * t + 64 * (3 + ks)))],
        postM, 'fm'))
    p('s_waitcnt vmcnt(0)')
    count(p, 4, 22)
    p.extend(stamp())
    p('s_setprio 1')
    if LONE:
        p('s_endpgm')
    call(p, 'L_sub_addr')
    poll(p, 4, 4, 'L_pollM1', 22)
    poll(p, 16 + 12, 4, 'L_pollI', 22)
    p.extend(stamp())
    p('L_g12:')
    call(p, 'L_sub_xdma')
    call(p, 'L_sub_xdma2')
    p('s_setprio 0')
    p('s_waitcnt vmcnt(%d)' % PREW)
    p('s_branch L_go')
    nstamp[0] = k0
    p('L_pad:')
    p('L_h2:')
    if WARM:
        p('s_branch L_hopret')
    p('L_gen2b:')
    p('v_and_b32 v23, 31, v0')
    p('v_lshlrev_b32 v23, 2, v23')
    p('v_add_u32 v23, %d, v23' % FLG)
    p('v_mov_b32 v22, 0')
    p('ds_write_b32 v23, v22')
    p('v_lshrrev_b32 v22, 2, v0')
    p('v_mul_u32_u24 v22, 43, v22')
    p('s_and_b32 s48, s28, 1')
    p('s_lshl_b32 s43, s48, 1')
    p('s_movk_i32 s42, 192')
    p('s_movk_i32 s26, 18432')
    p('s_movk_i32 s47, 3072')
    p('s_cmp_lt_u32 s28, 2')
    p('s_cselect_b32 s42, 576, s42')
    p('s_cselect_b32 s43, s43, 0')
    p('s_cselect_b32 s26, 55296, s26')
    p('s_cselect_b32 s47, 9216, s47')
    p('s_cselect_b32 s39, 384, 0')
    p('s_mov_b32 s27, 0x20000')
    p('s_movk_i32 s41, 32')
    for m in range(3):
        if m:
            p('v_add_u32 v22, 688, v22')
        p('v_lshrrev_b32 v27, 5, v22')
        p('v_lshrrev_b32 v28, 7, v22')
        p('v_bitop3_b32 v27, v27, s41, v%d bitop3:0x6a' % W)
        p('v_xor_b32 v29, s43, v28')
        p('v_mad_u32_u24 v27, v29, s42, v27')
        p('v_mul_u32_u24 v28, 0xc0, v28')
        p('v_sub_u32 v%d, v27, v28' % (140 + m))
    p('s_mul_i32 s40, s48, s47')
    p('s_add_u32 s39, s39, s40')
    p('s_lshl_b32 s37, s47, 1')
    p('s_lshr_b32 s38, s28, 1')
    p('s_mul_i32 s38, s38, 18432')
    p('s_mul_i32 s40, s48, 3072')
    p('s_add_u32 s38, s38, s40')
    p('s_add_u32 s38, s38, %d' % RAWV)
    p('s_cmp_lt_u32 s28, 2')
    p('s_waitcnt lgkmcnt(0)')
    p('s_cselect_b32 s24, s6, s8')
    p('s_cselect_b32 s25, s7, s9')
    p('s_setprio 1')
    fstamp(p, 0)
    p.extend(stamp())
    p('s_barrier')
    p.extend(stamp())
    for G in range(3):
        p('s_mov_b32 m0, s38')
        p('s_add_u32 s38, s38, 6144')
        for m in range(3):
            p('buffer_load_dwordx4 v%d, s[24:27], s39 offen offset:%d lds' % (140 + m, 1024 * m))
        p('s_add_u32 s39, s39, s37')
        if G == 1:
            p('v_and_b32 v20, 15, v0')
            p('v_lshrrev_b32 v21, 4, v0')
            p('v_and_b32 v25, 3, v0')
            p('s_and_b32 s44, s28, 1')
            p('s_lshr_b32 s45, s28, 1')
            p('s_lshl_b32 s41, s44, 3')
            FAa, FBa, FDW = 132, 133, 134
            p('v_and_b32 v22, 1, v0')
            p('v_xor_b32 v24, s44, v22')
            p('v_lshlrev_b32 v22, 4, v22')
            p('v_lshl_add_u32 v22, v24, 1, v22')
            p('v_and_b32 v23, 12, v0')
            p('v_bfe_u32 v24, v0, 1, 1')
            p('v_add3_u32 v22, v22, v23, v24')
            p('v_bfe_u32 v23, v0, 3, 1')
            p('v_lshlrev_b32 v23, 1, v23')
            p('v_xor_b32 v23, v23, v21')
            p('s_mov_b32 s46, %d' % RAWV)
            p('v_lshl_add_u32 v23, v23, 4, s46')
            p('s_movk_i32 s40, 192')
            p('v_mad_u32_u24 v%d, v22, s40, v23' % FAa)
            p('v_bfe_u32 v22, v0, 2, 2')
            p('v_lshl_add_u32 v22, v21, 3, v22')
            p('v_xor_b32 v23, s45, v21')
            p('v_and_b32 v23, 1, v23')
            p('v_lshlrev_b32 v23, 5, v23')
            p('v_mad_u32_u24 v22, v22, s40, v23')
            p('v_lshl_add_u32 v22, v25, 3, v22')
            p('v_add_u32 v%d, %d, v22' % (FBa, RAWO))
            p('s_lshl_b32 s46, s45, 4')
            p('s_add_u32 s47, s41, %d' % WV)
            p('v_lshl_add_u32 v24, v21, 8, s47')
            p('s_movk_i32 s41, %d' % WVJ)
            p('v_lshrrev_b32 v26, 2, v0')
            p('v_and_b32 v26, 8, v26')
            for t in range(3):
                p('v_add_u32 v22, s46, v20')
                p('v_mul_u32_u24 v23, 43, v22')
                p('v_lshrrev_b32 v23, 8, v23')
                p('v_mad_u32_u24 v22, v22, s41, v24')
                p('v_xor_b32 v27, v26, v23')
                p('v_lshl_add_u32 v22, v27, 4, v22')
                p('v_mul_u32_u24 v23, %d, v23' % (6 * WVJ))
                p('v_sub_u32 v%d, v22, v23' % (FDW + t))
                if t < 2:
                    p('s_add_u32 s46, s46, 32')
    count(p, 16 + 12, 22)
    fstamp(p, 1)
    p('s_setprio 0')
    win_base(p)
    p('s_mov_b32 s12, s4')
    p('s_mov_b32 s13, s5')
    call(p, 'L_sub_xoff')
    p('s_setprio 3')
    p('s_waitcnt vmcnt(0)')
    count(p, 12, 22)
    poll(p, 12, 4, 'L_pollV', 22)
    fstamp(p, 2)
    p('s_setprio %d' % P_FW)

    def postW(a, t, acc):
        return [cvt(acc[0], acc[0], acc[1]), cvt(acc[1], acc[2], acc[3]),
                Ins('ds_write_b64 v%d, %s offset:%d' % (FDW + t, acc[0:2], 1024 * a))]
    p.extend(fold_body(
        lambda a, ks, r: [Ins('ds_read_b128 %s, v%d offset:%d' % (r, FAa, 6144 * a + 64 * ks))],
        lambda t, ks, r: [Ins('ds_read_b64_tr_b16 %s, v%d offset:%d' % (r[2 * xx:2 * xx + 2], FBa,
                                                                        6144 * ks + 768 * xx + 64 * t))
                          for xx in range(2)],
        postW, 'fw'))
    count(p, 8, 22)
    p.extend(stamp())
    if LONE:
        p('s_endpgm')
    poll(p, 8, 4, 'L_pollW', 22)
    p.extend(stamp())
    call(p, 'L_sub_xdma')
    call(p, 'L_sub_xdma2')
    p('s_setprio 0')
    call(p, 'L_sub_addr')
    poll(p, 4, 4, 'L_pollM2', 22)
    p('s_waitcnt vmcnt(%d)' % PREW)
    p('s_branch L_go')
    nstamp[0] = k0
    if WARM:
        p('L_h0:')
        p('s_branch L_hopret')
    p('L_gen0b:')
    p('s_add_u32 s62, s62, L_g0y-L_gen0b')
    p('s_addc_u32 s63, s63, 0')
    p('s_setprio 0')
    p('v_and_b32 v20, 15, v0')
    p('v_lshrrev_b32 v21, 4, v0')
    p('v_min_u32 v24, 11, v20')
    p('v_and_b32 v26, 48, v0')
    p('v_and_b32 v22, 3, v24')
    p('v_mul_u32_u24 v22, 576, v22')
    p('v_lshrrev_b32 v23, 2, v24')
    p('v_mul_u32_u24 v23, 0xc0, v23')
    p('v_add3_u32 v22, v22, v23, v26')
    p('v_add_u32 v128, %d, v22' % XLT)
    p('s_and_b32 s44, s28, 1')
    p('s_lshr_b32 s45, s28, 1')
    p('s_lshl_b32 s41, s44, 3')
    p('s_mul_i32 s40, s44, 3072')
    img_addr(p, 22, 22)
    p('v_add_u32 v129, s40, v22')
    p('v_and_b32 v25, 3, v0')
    p('v_lshlrev_b32 v22, 8, v25')
    p('v_lshrrev_b32 v23, 2, v0')
    p('v_lshlrev_b32 v27, 2, v0')
    p('v_bitop3_b32 v23, v27, 8, v23 bitop3:0x6a')
    p('v_lshl_add_u32 v22, v23, 4, v22')
    p('v_add_u32 v131, s41, v22')
    p('s_cmp_eq_u32 s45, 0')
    p('s_cselect_b32 s42, 192, 0')
    p('s_add_u32 s42, s42, s41')
    p('s_add_u32 s42, s42, %d' % UT)
    p('v_mul_u32_u24 v24, %d, v24' % SSTR)
    p('v_add3_u32 v130, v24, v26, s42')
    p('s_setprio 2')
    fstamp(p, 1)
    p.extend(stamp())
    p('s_barrier')
    p.extend(stamp())
    p('L_sub_xdma2:')
    x_dma(p, XSPLIT, 9)
    p('s_setpc_b64 s[62:63]')
    p('L_g0y:')
    p('s_add_u32 s62, s62, L_g0z-L_g0y')
    p('s_addc_u32 s63, s63, 0')
    p('L_sub_addr:')
    main_addresses(p, 22)
    p('s_setpc_b64 s[62:63]')
    p('L_g0z:')
    p('s_setprio %d' % P_L1)
    p.extend(stamp())
    poll(p, 4, 4, 'L_pollM0', 22)
    p.extend(stamp())
    LA, LD, XL = 36, 72, 84
    for s in range(3):
        p('ds_read_b128 %s, v128 offset:%d' % (vr(XL + 4 * s), 64 * s))
    p('s_cmp_lg_u32 s45, 0')
    p('s_cbranch_scc1 L_L1u')
    for s in range(3):
        for t in range(3):
            p('ds_read_b128 %s, v129 offset:%d' % (vr(LA + 12 * t + 4 * s), 6144 * t + 1024 * s))
    p('s_branch L_L1c')
    p('L_L1u:')
    p.l.append(reset_lgkm())
    for s in range(3):
        for t in range(3):
            for x in range(2):
                p('ds_read_b64_tr_b16 %s, v131 offset:%d' % (vr(LA + 12 * t + 4 * s + 2 * x, 2),
                                                             6144 * s + 3072 * x + 1024 * t))
    p('L_L1c:')
    p('v_mov_b32 v22, %d' % FLG)
    p('v_mov_b32 v23, 1')
    for s in range(3):
        p('s_waitcnt lgkmcnt(%d)' % (3 * (2 - s)))
        for t in range(3):
            p.l.append(Ins('%s %s, %s, %s, %s' % (MF16, vr(LD + 4 * t), vr(LA + 12 * t + 4 * s), vr(XL + 4 * s),
                                                  '0' if s == 0 else vr(LD + 4 * t))))
    for t in range(3):
        p('v_cvt_pk_bf16_f32 v%d, v%d, v%d' % (LD + 4 * t, LD + 4 * t, LD + 4 * t + 1))
        p('v_cvt_pk_bf16_f32 v%d, v%d, v%d' % (LD + 4 * t + 1, LD + 4 * t + 2, LD + 4 * t + 3))
        p('ds_write_b64 v130, %s offset:%d' % (vr(LD + 4 * t, 2), 64 * t))
    p('s_mov_b64 exec, 1')
    p('ds_add_u32 v22, v23')
    p('s_mov_b64 exec, -1')
    fstamp(p, 2)
    p('L_go:')
    return p.l


def mf(d, a, b, first):
    return Ins('%s %s, %s, %s, %s' % (MF16, d, a, b, '0' if first else d))


def cvt(d, a, b):
    return Ins('v_cvt_pk_bf16_f32 %s, %s, %s' % (d, a, b))


def xred(p, op, a, tag):
    t = VReg('xr' + tag, 1)
    p('v_mov_b32 %s, %s' % (t, a))
    p('v_permlane32_swap_b32 %s, %s' % (a, t))
    p('%s %s, %s, %s' % (op, a, a, t))
    p('v_mov_b32 %s, %s' % (t, a))
    p('v_permlane16_swap_b32 %s, %s' % (a, t))
    p('%s %s, %s, %s' % (op, a, a, t))


def rowred(p, op, d, z):
    p('%s_dpp %s, %s, %s row_ror:8 row_mask:0xf bank_mask:0xf' % (op, d, z, z))
    for k in (4, 2, 1):
        p('%s_dpp %s, %s, %s row_ror:%d row_mask:0xf bank_mask:0xf' % (op, d, d, d, k))


def window(fast, withL, tag):
    V = lambda n, k=4: VReg(tag + n, k)
    XF = [[V('xf%d_%d' % (t, s)) for s in range(3)] for t in range(4)]
    EA = [V('ea%d' % s) for s in range(3)]
    E = [V('e%d' % t) for t in range(4)]
    W1 = [V('mt%d' % k) for k in range(18)]
    W2 = [V('wv%d' % k) for k in range(18)]
    W2s = [[V('wv%d_%d' % (q, k)) for k in range(18)] for q in range(2)] + [W2] if ORDER in 'ef' else [W2] * 3
    if ORDER == 'f':
        W2s[1] = W2
    TB = [[V('tb%d_%d' % (q, s)) for s in range(3)] for q in range(3)]
    S = [[V('s%d_%d' % (q, k)) for k in range(3)] for q in range(3)]
    PB = [[V('pb%d_%d' % (q, k)) for k in range(2)] for q in range(4)]
    XT = [[V('xt%d_%d' % (c, k)) for k in range(2)] for c in range(6)]
    YB = [[V('yb%d_%d' % (q, s)) for s in range(3)] for q in range(3)]
    eL = [V('el%d' % q, 1) for q in range(3)]
    sums = [V('sum%d' % q, 1) for q in range(3)]
    nt = 4 if withL else 3
    ZS = []

    def reads():
        p = Prog()
        for t in range(3):
            for s in range(3):
                p('ds_read_b128 %s, %s offset:%d' % (XF[t][s], aX, 3072 * t + 64 * s))
        for s in range(3):
            p('ds_read_b128 %s, %s offset:%d' % (EA[s], aE, 64 * s))
            if withL:
                p('ds_read_b128 %s, %s offset:%d' % (XF[3][s], aX3, 64 * s))
        for k in range(18):
            p('ds_read_b128 %s, %s offset:%d' % (W1[k], aW, MT + 1024 * k))
        for c in range(6):
            a = aT0 if c % 2 == 0 else aT1
            for kt in range(3):
                p('ds_read_b64_tr_b16 %s, %s offset:%d' % (XT[c][kt >> 1][2 * (kt & 1):2 * (kt & 1) + 2], a,
                                                           3072 * kt + 64 * (c >> 1)))
            p('ds_read_b64_tr_b16 %s, %s offset:%d' % (XT[c][1][2:4], aT3, 32 * c))
            for n, i in enumerate(p.l[-4:]):
                i.slack = XSLACK
                if XT0 and withL:
                    i.deadline = XT0 + XTD * (4 * c + n)
        gate = []
        if withL and USEGATE:
            fa, fv = V('fa', 1), V('fv', 1)
            p('v_mov_b32 %s, %d' % (fa, FLG))
            p.l[-1].late = True
            p('ds_read_b32 %s, %s offset:8' % (fv, fa))
            p('v_readfirstlane_b32 s46, %s' % fv)
            p('s_cmp_lt_u32 s46, 4')
            p('s_cbranch_scc1 L_waitW')
            p.l[-1].rset.add(('v', fv.base))
            gate = [p.l[-1]]
            GATE.append((fa, fv))
        seen = []
        for ws in W2s:
            if ws in seen:
                continue
            seen.append(ws)
            for k in range(18):
                p('ds_read_b128 %s, %s offset:%d' % (ws[k], aW, WV + WVJ * (k // 3) + 1024 * (k % 3)))
                p.l[-1].after = gate
                p.l[-1].slack = WSLACK
                if WV0 and withL and ws is W2s[0]:
                    p.l[-1].deadline = WV0 + WVD * k
        return p.l

    def T(qs):
        out = []
        for sp in range(3):
            for x in range(2):
                acc = {q: V('ta%d_%d_%d' % (q, sp, x)) for q in qs}
                for s in range(3):
                    for q in qs:
                        out.append(mf(acc[q], W1[(2 * sp + x) * 3 + s], XF[q][s], s == 0))
                for q in qs:
                    out.append(cvt(TB[q][sp][2 * x], acc[q][0], acc[q][1]))
                    out.append(cvt(TB[q][sp][2 * x + 1], acc[q][2], acc[q][3]))
        return out

    def Emf():
        return [mf(E[t], EA[s], XF[t][s], s == 0) for s in range(3) for t in range(nt)]

    def Lq():
        p = Prog()
        z, m, sm = V('z', 1), V('zm', 1), V('zs', 1)
        p('v_cndmask_b32 %s, %s, %s, s[%d:%d]' % (z, vNINF, E[3][1], sL48, sL48 + 1))
        for t, sg in ((0, sG0), (1, sG1), (2, sG2)):
            p('v_cndmask_b32 %s, %s, %s, s[%d:%d]' % (z, z, E[t][1], sg, sg + 1))
        rowred(p, 'v_max_f32', m, z)
        xred(p, 'v_max_f32', m, tag + 'zm')
        p('v_sub_f32 %s, %s, %s' % (z, z, m))
        p('v_exp_f32 %s, %s' % (z, z))
        rowred(p, 'v_add_f32', sm, z)
        if PAIRZ:
            ZS.extend([z, sm])
            return p.l
        xred(p, 'v_add_f32', sm, tag + 'zs')
        p('v_rcp_f32 %s, %s' % (sm, sm))
        return p.l + Lq2(z, sm)

    def Lq2(z, sm):
        p = Prog()
        p('v_mul_f32 %s, %s, %s' % (z, z, sm))
        p('v_cvt_pk_bf16_f32 %s, %s, %s' % (z, z, z))
        p('ds_write_b16 %s, %s offset:%d' % (aPSw, z, PS - SCR))
        w = p.l[-1]
        p('ds_read2_b64 %s, %s offset0:72 offset1:76' % (PB[3][0], aPSr))
        p.l[-1].after = [w]
        p('ds_read2_b64 %s, %s offset0:80 offset1:84' % (PB[3][1], aPSr))
        p.l[-1].after = [w]
        return p.l

    def keyL():
        return [Ins('v_cndmask_b32 %s, %s, %s, s[%d:%d]' % (eL[q], vNINF, E[q][0], sG0, sG0 + 1)) for q in range(3)]

    def Smf(q):
        return [mf(S[q][k], XF[k][s], TB[q][s], s == 0) for s in range(3) for k in range(3)]

    def soft(q):
        p = Prog()
        v = [S[q][k][r] for k in range(3) for r in range(4)] + [str(eL[q])]
        if not fast:
            m = V('m%d' % q, 1)
            p('v_max3_f32 %s, %s, %s, %s' % (m, v[12], v[0], v[1]))
            for k in range(2, 12, 2):
                p('v_max3_f32 %s, %s, %s, %s' % (m, m, v[k], v[k + 1]))
            xred(p, 'v_max_f32', m, tag + 'm%d' % q)
            for k in range(13):
                p('v_sub_f32 %s, %s, %s' % (v[k], v[k], m))
        order = [12] + list(range(12))
        for k in order:
            p('v_exp_f32 %s, %s' % (v[k], v[k]))
        if MSUM:
            for k in range(6):
                p.l.append(cvt(PB[q][k >> 2][k & 3], v[2 * k], v[2 * k + 1]))
            p.l.append(cvt(PB[q][1][2], v[12], '0'))
            p.l[-1].after = [p.l[-2]]
            p('v_mov_b32 %s, 0' % PB[q][1][3])
            p.l[-1].after = [p.l[-2]]
            return p.l
        p('v_add_f32 %s, %s, %s' % (sums[q], v[12], v[0]))
        for k in range(1, 12):
            p('v_add_f32 %s, %s, %s' % (sums[q], sums[q], v[k]))
        rc = V('rc%d' % q, 1)
        if q == 0 and ZS:
            z, zs = ZS
            p('v_permlane32_swap_b32 %s, %s' % (sums[0], zs))
            p('v_add_f32 %s, %s, %s' % (sums[0], sums[0], zs))
            p('v_mov_b32 %s, %s' % (zs, sums[0]))
            p('v_permlane16_swap_b32 %s, %s' % (sums[0], zs))
            p('v_add_f32 %s, %s, %s' % (sums[0], sums[0], zs))
            p('v_rcp_f32 %s, %s' % (rc, sums[0]))
            p('v_mov_b32 %s, %s' % (zs, rc))
            p('v_permlane32_swap_b32 %s, %s' % (rc, zs))
            p.extend(Lq2(z, zs))
        else:
            xred(p, 'v_add_f32', sums[q], tag + 's%d' % q)
            p('v_rcp_f32 %s, %s' % (rc, sums[q]))
        for k in range(6):
            p('v_mul_f32 %s, %s, %s' % (v[2 * k], v[2 * k], rc))
            p('v_mul_f32 %s, %s, %s' % (v[2 * k + 1], v[2 * k + 1], rc))
            p.l.append(cvt(PB[q][k >> 2][k & 3], v[2 * k], v[2 * k + 1]))
        p('v_mul_f32 %s, %s, %s' % (v[12], v[12], rc))
        p.l.append(cvt(PB[q][1][2], v[12], '0'))
        p('v_mov_b32 %s, 0' % PB[q][1][3])
        p.l[-1].after = [p.l[-2]]
        return p.l

    def check():
        p = Prog()
        hi, lo = V('hi', 1), V('lo', 1)
        sv = RC if MSUM else sums
        p('v_max3_u32 %s, %s, %s, %s' % (hi, sv[0], sv[1], sv[2]))
        p('v_min3_u32 %s, %s, %s, %s' % (lo, sv[0], sv[1], sv[2]))
        p('v_cmp_lt_u32 vcc, 0x5f800000, %s' % hi)
        p('s_mov_b64 s[%d:%d], vcc' % (sBAD, sBAD + 1))
        p('v_cmp_gt_u32 vcc, 0x1f800000, %s' % lo)
        p('s_or_b64 s[%d:%d], s[%d:%d], vcc' % (sBAD, sBAD + 1, sBAD, sBAD + 1))
        return p.l

    ONES = V('ones')
    SUMA = [V('suma%d' % q) for q in range(3)]
    RC = [V('rcy%d' % q, 1) for q in range(3)]
    state = {'ones': False, 'nsum': 0, 'ylw': []}
    OB = [[V('ob%d_%d' % (q, r)) for r in range(4)] for q in range(3)]
    CH2 = ((0, 0), (1, 0), (0, 1), (1, 1)) if CHAIN else ((0, 0), (0, 1), (1, 0), (1, 1))

    def U(q):
        out = []
        if not MSUM:
            return out
        if not state['ones']:
            state['ones'] = True
            for k in range(4):
                out.append(Ins('v_mov_b32 %s, 0x3f803f80' % ONES[k]))
                out[-1].late = True
        out += [mf(SUMA[q], ONES, PB[q][k], k == 0) for k in range(2)]
        out.append(Ins('v_rcp_f32 %s, %s' % (RC[q], SUMA[q][0])))
        out[-1].deadline = 4 * (nmf() + 2) + 24
        return out

    def Yp(q, s):
        out = []
        acc = [V('ya%d_%d_%d' % (q, s, x)) for x in range(2)]
        for k, x in CH2:
            out.append(mf(acc[x], XT[2 * s + x][k], PB[q][k], k == 0))
        for r in range(4):
            if MSUM:
                for x in range(2):
                    out.append(Ins('v_mul_f32 %s, %s, %s' % (acc[x][r], acc[x][r], RC[q])))
            out.append(cvt(YB[q][s][r], acc[0][r], acc[1][r]))
            if MSUM:
                out[-1].deadline = 4 * (nmf() + 4) + YLAG
        return out

    def Lp(s):
        if not withL:
            return []
        out = []
        acc = [V('yl%d_%d' % (s, x)) for x in range(2)]
        for k, x in CH2:
            out.append(mf(acc[x], PB[3][k], XT[2 * s + x][k], k == 0))
        y = V('ylc%d' % s, 1)
        out.append(cvt(y, acc[0][0], acc[1][0]))
        out.append(Ins('ds_write_b32 %s, %s offset:%d' % (aYLw, y, YL - SCR + 64 * s)))
        out[-1].deadline = 4 * (nmf() + 4) + 60
        state['ylw'].append(out[-1])
        if len(state['ylw']) == 3:
            out.append(Ins('ds_write_b32 %s, %s' % (aFw, aFw)))
            out[-1].after = state['ylw']
            out[-1].deadline = 4 * (nmf() + 4) + 80
        return out

    def Op(q, jj):
        out = []
        acc = [V('oa%d_%d_%d' % (q, jj, x)) for x in range(2)]
        for s, x in ([(s, x) for x in range(2) for s in range(3)] if CHAIN else
                     [(s, x) for s in range(3) for x in range(2)]):
            out.append(mf(acc[x], YB[q][s], W2s[q][(2 * jj + x) * 3 + s], s == 0))
        for r in range(4):
            out.append(cvt(OB[q][r][jj], acc[0][r], acc[1][r]))
        state['o%d' % q] = state.get('o%d' % q, 0) + 1
        if state['o%d' % q] == 3 and not NOST:
            for r in range(4):
                T0 = 16 * q + 4 * r
                row0 = T0 // 7
                thr = min(4, 7 * (row0 + 1) - T0)
                out.append(Ins('buffer_store_dwordx3 %s, %s, s[16:19], s%d offen offset:%d %s'
                               % (OB[q][r][0:3], vS[thr], sROW + row0, 192 * (T0 - 7 * row0), STFLAG)))
                out[-1].deadline = 4 * (nmf() + 6) + STD0 + STGAP * r
        return out

    L = (lambda f: f()) if withL else (lambda f: [])
    seq = reads()

    def nmf():
        return sum(1 for i in seq if i.kind == 'mfma') - (3 if withL and PRE else 0)

    def CK():
        if not fast:
            return []
        ck = check()
        ck[-1].deadline = 4 * nmf() + 40
        return ck
    macro = {'a': 'u0 y00 y01 y02', 'b': 'u1 y10 y11 y12', 'c': 'u2 y20 y21 y22 k', 'l': 'l0 l1 l2',
             '0': 'o00 o01 o02', '1': 'o10 o11 o12', '2': 'o20 o21 o22'}
    toks = []
    for tk in PLAN.split(','):
        toks += macro[tk].split() if tk in macro else [tk]
    for tk in toks:
        c = tk[0]
        if c == 'e':
            seq += Emf() + keyL() + L(Lq)
        elif c == 't':
            seq += T([int(x) for x in tk[1:]])
        elif c == 's':
            seq += Smf(int(tk[1])) + soft(int(tk[1]))
        elif c == 'u':
            seq += U(int(tk[1]))
        elif c == 'y':
            seq += Yp(int(tk[1]), int(tk[2]))
        elif c == 'l':
            seq += Lp(int(tk[1]))
        elif c == 'o':
            seq += Op(int(tk[1]), int(tk[2]))
        elif c == 'k':
            seq += CK()
    pre = []
    if withL and PRE:
        early = set(EA) | set(XF[3]) | set(W1[:PRE]) | {E[3]}
        rest = []
        for i in seq:
            wb = {VReg.all[r] for k, r in i.wset if k == 'v' and r >= VBASE}
            (pre if wb and wb <= early else rest).append(i)
        seq = rest
    return pre, seq, W2


def ltail(W2):
    p = Prog()
    YL2 = [VReg('yl2_%d' % s, 4) for s in range(3)]
    f = VReg('fl', 2)
    aFr, aYLr, vOL, t1, t2 = [VReg(n, 1) for n in 'aFr aYLr vOL t1 t2'.split()]
    p('v_add_u32 %s, -8, %s' % (aFr, aFw))
    p('s_mul_i32 s41, s28, %d' % SSTR)
    p('s_add_u32 s41, s41, %d' % YL)
    p('v_and_b32 %s, 48, v0' % t1)
    p('v_bfe_u32 %s, v0, 2, 2' % t2)
    p('v_min_u32 %s, 2, %s' % (t2, t2))
    p('v_mul_u32_u24 %s, %d, %s' % (t2, 4 * SSTR, t2))
    p('v_add3_u32 %s, %s, %s, s41' % (aYLr, t1, t2))
    p('L_poll2:')
    p('ds_read_b64 %s, %s' % (f, aFr))
    for s in range(3):
        p('ds_read_b128 %s, %s offset:%d' % (YL2[s], aYLr, 64 * s))
    p('s_mov_b32 s42, %d' % ((GENJ - 192) // 16))
    p('v_mul_lo_u32 %s, %s, s42' % (vOL, t1))
    p('v_add_u32 %s, %s, %s' % (vOL, vOL, vS[4]))
    p('s_waitcnt lgkmcnt(0)')
    p('v_and_b32 %s, %s, %s' % (f[0], f[0], f[1]))
    p('v_readfirstlane_b32 s40, %s' % f[0])
    p('s_cmp_eq_u32 s40, 0')
    p('s_cbranch_scc1 L_poll2')
    acc = [VReg('ola%d' % j, 4) for j in range(6)]
    ob = VReg('olb', 4)
    for s in range(3):
        for j in range(6):
            p.l.append(mf(acc[j], YL2[s], W2[3 * j + s], s == 0))
    for jj in range(3):
        p.l.append(cvt(ob[jj], acc[2 * jj][0], acc[2 * jj + 1][0]))
    p('buffer_store_dwordx3 %s, %s, s[16:19], s%d offen %s' % (ob[0:3], vOL, sBASE0, STFLAG))
    return p.l


def build():
    pro = prologue()
    pre, seq, W2 = window(FAST, True, 'f')
    lt = ltail(W2)
    lblocks = set()
    for i in lt:
        lblocks |= blocks_of(i)
    live = {b for b in lblocks if b in PIN or b in W2}
    live0 = set(PIN)
    for i in pre:
        live0 |= blocks_of(i)
    import random
    best = None
    for seed in range(SEED0, SEED0 + TRIES):
        rnd = random.Random(seed)
        cand, t = sched.schedule(seq, slack=SLACK, limit=LIMIT, live0=live0, liveout=live, rnd=rnd,
                                 noise=NOISE if seed else 0)
        try:
            allocate(pre + cand, LO, HI, pre=dict(PIN), liveout=live)
        except RuntimeError:
            continue
        if best is None or t < best[1]:
            best = (cand, t, seed)
    assert best, 'no schedule fits'
    main, t = best[0], best[1]
    print('main schedule %d slots, seed %d' % (t, best[2]), file=sys.stderr)
    pa, pv = VReg('pa', 1), VReg('pv', 1)
    q = Prog()
    q('v_mov_b32 %s, %d' % (pa, FLG))
    q('L_poll1:')
    q('ds_read_b32 %s, %s' % (pv, pa))
    q('s_waitcnt lgkmcnt(0)')
    q('v_readfirstlane_b32 s40, %s' % pv)
    q('s_cmp_lt_u32 s40, %d' % (4 if USEGATE else 8))
    q('s_cbranch_scc1 L_poll1')
    q.l[-1].rset.add(('v', pa.base))
    q('s_setprio 0')
    pre1 = [i for i in pre if i.kind == 'ds_read' and str(aE) + ' ' not in i.text]
    pre2 = [i for i in pre if i not in pre1]
    if PH:
        k = [n for n, i in enumerate(main) if getattr(i, 'phase', False)][0]
        j = max(n for n in range(k) if main[n].kind == 'mfma')
        main.insert(k, Ins('s_setprio %s' % PH[2]))
        main.insert(j + 1, Ins('s_setprio %s' % PH[1]))
        q.l[-1] = Ins('s_setprio %s' % PH[0])
    if PR2:
        nm = 0
        for k, i in enumerate(main):
            nm += i.kind == 'mfma'
            if nm == PR2:
                main.insert(k + 1, Ins('s_setprio 0'))
                break
        q('s_cmp_lt_u32 s3, 8')
        q('s_cbranch_scc1 L_pr')
        q('s_setprio 1')
        q('L_pr:')
    main = pre1 + q.l + stamp() + pre2 + [Ins('L_page:')] + ([Ins('L_h1:'), Ins('s_cbranch_execz L_hopret')] if WARM else []) + [Ins('s_waitcnt vmcnt(0) lgkmcnt(0)')] + ([Ins('s_barrier')] if SYNC else []) + stamp() + main
    asg, peak = allocate(main, LO, HI, pre=dict(PIN), liveout=live)
    asgl, pl = allocate(lt, LO, HI, pre={b: asg[b] for b in live}, liveout=lblocks)
    print('peak regs', peak + 1, file=sys.stderr)
    mainr = rewrite(main, asg)
    if USEGATE:
        k = [i for i, x in enumerate(mainr) if x.text.startswith('s_cbranch_scc1 L_waitW')][0]
        mainr.insert(k + 1, Ins('L_backW:'))
    body = pro + mainr
    body += stamp()
    p = Prog()
    p('L_mainend:')
    p('s_cmp_ge_u32 s3, 8')
    p('s_cbranch_scc1 L_tail')
    p('L_noL:')
    dbg = STAMP or AMP >= 0
    if FAST:
        if FORCESLOW:
            p('s_branch L_slow')
        else:
            p('s_cmp_lg_u64 s[%d:%d], 0' % (sBAD, sBAD + 1))
            p('s_cbranch_scc1 L_slow')
    p('L_done:')
    p('s_branch L_dbg' if dbg else 's_endpgm')
    p('L_pad2:')
    p('L_h3:')
    if WARM:
        p('s_branch L_hopret')
    p('L_tail:')
    p('s_nop 4')
    body += p.l + rewrite(lt, asgl) + [Ins('s_branch L_noL'), Ins('L_fin:')]
    if dbg:
        body += [Ins('L_dbg:')] + stamp() + stamp_dump() + [Ins('s_endpgm')]
    if USEGATE:
        fa, fv = GATE[0]
        p = Prog()
        p('L_waitW:')
        p('v_mov_b32 v%d, %d' % (asg[fv], FLG))
        p('ds_read_b32 v%d, v%d offset:8' % (asg[fv], asg[fv]))
        p('s_waitcnt lgkmcnt(0)')
        p('v_readfirstlane_b32 s46, v%d' % asg[fv])
        p('s_cmp_lt_u32 s46, 4')
        p('s_cbranch_scc1 L_waitW')
        p('s_branch L_backW')
        body += p.l
    if FAST:
        p = Prog()
        p('L_slow:')
        p('s_waitcnt vmcnt(0) lgkmcnt(0)')
        p('s_nop 7')
        call(p, 'L_sub_addr')
        global ORDER, MSUM, WSLACK, XSLACK, PLAN
        ORDER, MSUM, WSLACK, XSLACK = 'c', 0, 16, 16
        PLAN = 't012,e,s0,s1,s2,a,b,c,0,1,2'
        sched.OVER, sched.EAGER, sched.LDS_LAT = 0, 24, 28
        _, seq2, _ = window(False, False, 'g')
        slow, _ = sched.schedule(seq2, slack=16)
        asg2, _ = allocate(slow, LO, HI, pre=dict(PIN))
        body += p.l + rewrite(slow, asg2) + [Ins('s_branch L_done')]
    body = finalize(body)
    hdr = open(os.path.join(os.path.dirname(os.path.abspath(__file__)), 'header.txt')).read()
    s = hdr
    s += '; @launch grid=(%d,1,1) block=(768,1,1) lds=%d\n' % (NWG + NH, LDS)
    s += '.amdgcn_target "amdgcn-amd-amdhsa--gfx950"\n.text\n.p2align 12\nL_anchor:\n.globl %s_kernel\n.p2align 8\n' % NAME
    s += '.type %s_kernel,@function\n%s_kernel:\n' % (NAME, NAME)
    txt = render(body)
    if ALIGN:
        txt = txt.replace('L_pad:\n', 'L_pad:\n.fill ((8192-((L_pad-L_anchor)+(L_page-L_h2))%4096)%4096)/4, 4, 0xbf810000\n')
    txt = txt.replace('L_pad2:\n', 'L_pad2:\n.fill ((4096-(L_pad2-L_page))/4)*(((L_pad2-L_page)/4096)^1), 4, 0xbf810000\n')
    s += txt
    s += 'L_end:\n    s_endpgm\n'
    s += '''.section .rodata,"a"
.p2align 6
.amdhsa_kernel %s_kernel
  .amdhsa_next_free_vgpr 168
  .amdhsa_next_free_sgpr 102
  .amdhsa_accum_offset 168
  .amdhsa_group_segment_fixed_size 0
  .amdhsa_kernarg_size 48
  .amdhsa_user_sgpr_count 2
  .amdhsa_user_sgpr_kernarg_segment_ptr 1
  .amdhsa_system_sgpr_workgroup_id_x 1
.end_amdhsa_kernel
''' % NAME
    print('main', stats(finalize(rewrite(main, asg))), 'nstamps', nstamp[0], file=sys.stderr)
    return s


if __name__ == '__main__':
    open(sys.argv[1], 'w').write(build())
```

```python
import sys, struct, math, os
sys.path.insert(0, os.path.dirname(os.path.abspath(__file__)))
from asmlib import *
import sched

NAME = 'standalone__swin_window_attn__vision'
XBYTES = 27433728
NWG = 243
MT, WV = 0, 18432
WVJ = 3072 + 48
XBUF0, XSTR = 37248, 9216
RAWM = XBUF0 + 4 * XSTR
RAWV = XBUF0 + 8 * XSTR
RAWO = RAWV + 18432
SCR = XBUF0 + 12 * XSTR
SSTR = 720
UT, YL, PS = SCR, SCR + 384, SCR + 576
XLT = SCR + 12 * SSTR
FLG = XLT + 2304
LDS = FLG + 128
ROWS = 72576
ROWJ = ROWS - 1344
GENJ = 18 * 508032
LOFF = 6 * ROWS + 6 * 192

opts = dict(a.split('=', 1) for a in sys.argv[2:] if '=' in a)
LDFLAG = opts.get('ld', '').replace('+', ' ')
STFLAG = opts.get('st', 'sc1').replace('+', ' ')
STAMP = int(opts.get('stamp', '0'))
AMP = int(opts.get('amp', '-1'))
AMPGEN = int(opts.get('ampgen', '-1'))
FAST = int(opts.get('fast', '1'))
FORCESLOW = int(opts.get('forceslow', '0'))
LONE = int(opts.get('lone', '0'))
SLACK = int(opts.get('slack', '16'))
ORDER = opts.get('order', 'd')
PREFETCH = int(opts.get('pf', '0'))
XSPLIT = int(opts.get('xsplit', '3'))
FWPRIO = int(opts.get('fwprio', '3'))
PRIO0 = int(opts.get('prio0', '0'))
NH = int(opts.get('nh', '8'))
XLTLATE = int(opts.get('xltlate', '0'))
PRE = int(opts.get('pre', '18'))
PSLEEP = int(opts.get('psleep', '0'))
P_L1 = int(opts.get('pl1', '3'))
P_FW = int(opts.get('pfw', '2'))
X1GATE = int(opts.get('x1gate', '0'))
ALIGN = int(opts.get('align', '1'))
PR2 = int(opts.get('pr2', '0'))
CHAIN = int(opts.get('chain', '1'))
STD0 = int(opts.get('std0', '20'))
STGAP = int(opts.get('stgap', '12'))
WARM = int(opts.get('warm', '1'))
PAIRZ = int(opts.get('pairz', '1'))
PH = opts.get('ph', '')
DRAIN = int(opts.get('drain', '1'))
XLTL = int(opts.get('xltl', '0'))
EORD = opts.get('eord', 'al0b1c2')
WSLACK = int(opts.get('wslack', '16'))
USEGATE = int(opts.get('gate', '0'))
PREW = int(opts.get('prew', '6'))
B0 = int(opts.get('b0', '0'))
SYNC = int(opts.get('sync', '0'))
NOST = int(opts.get('nost', '0'))
P_FM = int(opts.get('pfm', '3'))
sched.LDS_LAT = int(opts.get('ldslat', '28'))
sched.EAGER = int(opts.get('eager', '24'))

FMT = 8 if XLTL else 4
cscale = (96.0 ** -0.5) * math.log2(math.e)
CS_HEX = '0x%08x' % struct.unpack('<I', struct.pack('<f', cscale))[0]
for idx in range(2916):
    assert (idx * 1214) >> 16 == idx // 54
for e in range(96):
    assert (e * 43) >> 8 == e // 6

MF16 = 'v_mfma_f32_16x16x32_bf16'

PIN = {}


def pin(name, r):
    v = VReg(name, 1)
    PIN[v] = r
    v.ph = r
    return v


aW, aT0, aT1, aT3, aYLw, aFw, aPSr, aX, aX3, aE, aPSw, vNINF = [
    pin(n, k + 5) for k, n in enumerate('aW aT0 aT1 aT3 aYLw aFw aPSr aX aX3 aE aPSw vNINF'.split())]
vS = {k: pin('vS%d' % k, k) for k in (1, 2, 3, 4)}
LO, HI = 1, 167
L16 = 19
XOFF = 152
XL = 140
sBUF, sBASE0 = 60, 61
sROW = 30
sG0, sG1, sG2, sL48, sBAD = 50, 52, 54, 56, 58

nstamp = [0]
GATE = []
NHOP = []


def vr(b, n=4):
    return 'v[%d:%d]' % (b, b + n - 1)


def stamp(real=False):
    if not STAMP and AMP < 0:
        return []
    k = nstamp[0]
    nstamp[0] += 1
    p = Prog()
    if AMP >= 0:
        if k == 0 or k == AMP:
            p('s_memrealtime s[%d:%d]' % ((64, 65) if k == 0 else (68, 69)))
            p('s_waitcnt lgkmcnt(0)')
        return p.l
    p('%s s[%d:%d]' % ('s_memrealtime' if (real or STAMP == 3) else 's_memtime', 64 + 2 * k, 65 + 2 * k))
    p('s_waitcnt lgkmcnt(0)')
    return p.l


def fstamp(p, k):
    if STAMP != 2:
        return
    p('s_memtime s[%d:%d]' % (88 + 2 * k, 89 + 2 * k))
    p('s_waitcnt lgkmcnt(0)')


def stamp_dump():
    p = Prog()
    if AMP >= 0:
        p('s_waitcnt vmcnt(0)')
        p.extend(stamp())
        p('s_sub_u32 s68, s68, s64')
        p('s_mul_i32 s68, s68, 10')
        if AMPGEN >= 0:
            p('s_cmp_eq_u32 s29, %d' % AMPGEN)
            p('s_cselect_b32 s68, s68, 0')
        p('s_add_u32 s68, s68, 4000')
        p('s_min_u32 s68, s68, 40000')
        p('L_spin:')
        p('s_memrealtime s[66:67]')
        p('s_waitcnt lgkmcnt(0)')
        p('s_sub_u32 s66, s66, s64')
        p('s_cmp_lt_u32 s66, s68')
        p('s_cbranch_scc1 L_spin')
        return p.l
    if not STAMP:
        return []
    p('s_waitcnt vmcnt(0)')
    p.extend(stamp())
    p.extend(stamp(True))
    p('s_load_dwordx2 s[4:5], s[0:1], 40')
    p('s_mul_i32 s6, s2, 12')
    p('s_add_u32 s6, s6, s3')
    p('s_lshl_b32 s8, s6, 7')
    p('s_mov_b32 s6, 0x1000000')
    p('s_mov_b32 s7, 0x20000')
    p('s_getreg_b32 s9, hwreg(HW_REG_HW_ID)')
    p('s_getreg_b32 s10, hwreg(HW_REG_XCC_ID)')
    p('s_waitcnt lgkmcnt(0)')
    p('s_mov_b64 exec, 1')
    p('v_mov_b32 v1, 0')
    for k in range(nstamp[0]):
        p('v_mov_b32 v2, s%d' % (64 + 2 * k))
        p('buffer_store_dword v2, v1, s[4:7], s8 offen offset:%d' % (4 * k))
    if STAMP == 2:
        for k in range(6):
            p('v_mov_b32 v2, s%d' % (88 + 2 * k))
            p('buffer_store_dword v2, v1, s[4:7], s8 offen offset:%d' % (64 + 4 * k))
    p('v_mov_b32 v2, s9')
    p('buffer_store_dword v2, v1, s[4:7], s8 offen offset:120')
    p('v_mov_b32 v2, s10')
    p('buffer_store_dword v2, v1, s[4:7], s8 offen offset:124')
    return p.l


def x_dma(p, lo=0, hi=9):
    for n in range(lo, hi):
        r0 = (64 * n) // 84
        if n % 4 == 0 or n == lo:
            p('s_add_u32 s40, s%d, %d' % (sBUF, 1024 * (n & ~3)))
            p('s_mov_b32 m0, s40')
        p('s_add_u32 s41, s%d, %d' % (sROW, 1024 * (n & ~3) + ROWJ * r0))
        p('buffer_load_dwordx4 v%d, s[12:15], s41 offen offset:%d %s lds' % (XOFF + n, 1024 * (n & 3), LDFLAG))


def win_base(p):
    p('s_mov_b32 s14, %d' % XBYTES)
    p('s_mov_b32 s15, 0x20000')
    p('s_lshl_b32 s40, s2, 2')
    p('s_add_u32 s40, s40, s28')
    p('s_mul_i32 s41, s40, 1214')
    p('s_lshr_b32 s41, s41, 16')
    p('s_mul_i32 s41, s41, 435456')
    p('s_mul_i32 s40, s40, 1344')
    p('s_add_u32 s%d, s40, s41' % sBASE0)
    p('s_mul_i32 s40, s29, %d' % GENJ)
    p('s_add_u32 s%d, s40, s%d' % (sROW, sBASE0))
    p('s_add_u32 s%d, s%d, %d' % (sBASE0, sBASE0, LOFF))
    p('s_mul_i32 s%d, s3, %d' % (sBUF, XSTR))
    p('s_add_u32 s%d, s%d, %d' % (sBUF, sBUF, XBUF0))


def count(p, off, t):
    p('v_mov_b32 v%d, %d' % (t, FLG))
    p('v_mov_b32 v%d, 1' % (t + 1))
    p('s_mov_b64 exec, 1')
    p('ds_add_u32 v%d, v%d offset:%d' % (t, t + 1, off))
    p('s_mov_b64 exec, -1')


def poll(p, off, target, label, t):
    p('v_mov_b32 v%d, %d' % (t, FLG))
    p('%s:' % label)
    if PSLEEP:
        p('s_sleep %d' % PSLEEP)
    p('ds_read_b32 v%d, v%d offset:%d' % (t + 1, t, off))
    p('s_waitcnt lgkmcnt(0)')
    p('v_readfirstlane_b32 s40, v%d' % (t + 1))
    p('s_cmp_lt_u32 s40, %d' % target)
    p('s_cbranch_scc1 %s' % label)


def img_addr(p, d, t):
    p('v_lshrrev_b32 v%d, 2, v0' % t)
    p('v_bitop3_b32 v%d, v%d, 8, v0 bitop3:0x6a' % (t, t))
    p('v_lshlrev_b32 v%d, 4, v%d' % (d, t))


def x_offsets(p, t):
    sw = [XOFF, XOFF + 4, XOFF + 8]
    p('v_lshrrev_b32 v%d, 4, v0' % t)
    p('v_mul_u32_u24 v%d, 43, v%d' % (t, t))
    p('s_mov_b32 s41, 0x30')
    for m in range(3):
        if m:
            p('v_add_u32 v%d, %d, v%d' % (t + 1, 4 * m * 43, t))
            p('v_lshrrev_b32 v%d, 3, v%d' % (t + 1, t + 1))
        else:
            p('v_lshrrev_b32 v%d, 3, v%d' % (t + 1, t))
        p('v_bitop3_b32 v%d, v%d, s41, v%d bitop3:0x6a' % (sw[m], t + 1, L16))
        p('v_add_u32 v%d, 0x%x, v%d' % (t + 2 + m, ROWJ, sw[m]))
    for n in range(9):
        r0 = (64 * n) // 84
        thr = 84 * (r0 + 1) - 64 * n
        if thr >= 64:
            assert XOFF + n == sw[n % 3]
        else:
            p('s_lshl_b64 s[42:43], -1, %d' % thr)
            p('v_cndmask_b32 v%d, v%d, v%d, s[42:43]' % (XOFF + n, sw[n % 3], t + 2 + n % 3))


def main_addresses(p, t):
    i, g, a, b, c = t, t + 1, t + 2, t + 3, t + 4
    p('v_and_b32 v%d, 15, v0' % i)
    p('v_lshrrev_b32 v%d, 4, v0' % g)
    img_addr(p, aW.ph, a)
    p('s_movk_i32 s40, 192')
    p('v_and_b32 v%d, 3, v0' % a)
    p('v_bfe_u32 v%d, v0, 2, 2' % b)
    p('v_lshl_add_u32 v%d, v%d, 2, v%d' % (c, a, b))
    p('v_xor_b32 v%d, v%d, v%d' % (aX.ph, g, a))
    p('v_lshl_add_u32 v%d, v%d, 4, s%d' % (aX.ph, aX.ph, sBUF))
    p('v_mad_u32_u24 v%d, v%d, s40, v%d' % (aX.ph, c, aX.ph))
    p('s_mul_i32 s41, s28, 576')
    p('s_mul_i32 s42, s29, 192')
    p('s_add_u32 s41, s41, s42')
    p('s_add_u32 s41, s41, %d' % XLT)
    p('v_lshl_add_u32 v%d, v%d, 4, s41' % (aX3.ph, g))
    p('v_lshl_add_u32 v%d, v%d, 3, s41' % (aT3.ph, a))
    p('v_lshlrev_b32 v%d, 1, v%d' % (c, b))
    p('v_xor_b32 v%d, v%d, v%d' % (c, c, a))
    p('v_lshl_add_u32 v%d, v%d, 3, s%d' % (aT0.ph, c, sBUF))
    p('v_lshl_add_u32 v%d, v%d, 2, v%d' % (c, b, g))
    p('v_mad_u32_u24 v%d, v%d, s40, v%d' % (aT0.ph, c, aT0.ph))
    p('v_xor_b32 v%d, 32, v%d' % (aT1.ph, aT0.ph))
    p('s_mul_i32 s41, s3, %d' % SSTR)
    p('s_add_u32 s41, s41, %d' % SCR)
    p('v_lshl_add_u32 v%d, v%d, 4, s41' % (aE.ph, g))
    p('v_and_b32 v%d, 1, v0' % c)
    p('v_mad_u32_u24 v%d, v%d, s40, v%d' % (aE.ph, c, aE.ph))
    p('v_lshl_add_u32 v%d, v0, 1, s41' % aPSw.ph)
    p('v_lshl_add_u32 v%d, v%d, 3, s41' % (aPSr.ph, g))
    p('v_lshl_add_u32 v%d, v%d, 2, s41' % (aYLw.ph, i))
    p('s_lshl_b32 s41, s28, 4')
    p('s_lshl_b32 s42, s29, 2')
    p('s_add_u32 s41, s41, s42')
    p('s_add_u32 s41, s41, %d' % (FLG + 16))
    p('v_mov_b32 v%d, s41' % aFw.ph)
    p('v_mov_b32 v%d, 0xff800000' % vNINF.ph)
    p('v_mul_u32_u24 v%d, 12, v%d' % (c, i))
    p('v_mad_u32_u24 v%d, v%d, s40, v%d' % (vS[4].ph, g, c))
    p('v_add_u32 v%d, 0x%x, v%d' % (c, ROWJ, vS[4].ph))
    for thr in (1, 2, 3):
        p('s_lshl_b64 s[42:43], -1, %d' % (16 * thr))
        p('v_cndmask_b32 v%d, v%d, v%d, s[42:43]' % (vS[thr].ph, vS[4].ph, c))
    for k in range(1, 7):
        p('s_add_u32 s%d, s%d, %d' % (sROW + k, sROW, ROWS * k))
    p('s_mov_b32 s16, s10')
    p('s_mov_b32 s17, s11')
    p('s_mov_b32 s18, %d' % XBYTES)
    p('s_mov_b32 s19, 0x20000')
    p('s_mov_b64 s[%d:%d], 0xffff' % (sG0, sG0 + 1))
    p('s_lshl_b64 s[%d:%d], s[%d:%d], 16' % (sG1, sG1 + 1, sG0, sG0 + 1))
    p('s_lshl_b64 s[%d:%d], s[%d:%d], 32' % (sG2, sG2 + 1, sG0, sG0 + 1))
    p('s_lshl_b64 s[%d:%d], 1, 48' % (sL48, sL48 + 1))


def fold_body(rdA, rdB, post, tag):
    A = [[VReg('%sa%d%d' % (tag, a, k), 4) for k in range(3)] for a in range(3)]
    B = [[VReg('%sb%d%d' % (tag, a, k), 4) for k in range(3)] for a in range(3)]
    seq = []
    for kind, a in (('A', 0), ('B', 0), ('B', 1), ('A', 1), ('B', 2), ('A', 2)):
        for ks in range(3):
            seq += rdA(a, ks, A[a][ks]) if kind == 'A' else rdB(a, ks, B[a][ks])
    for i in seq:
        i.slack = 1000
    nb = 0
    for a, t in ((0, 0), (0, 1), (1, 0), (1, 1), (0, 2), (1, 2), (2, 0), (2, 1), (2, 2)):
        acc = VReg('%sd%d%d' % (tag, a, t), 4)
        for ks in range(3):
            seq.append(mf(acc, A[a][ks], B[t][ks], ks == 0))
        nb += 3
        l = post(a, t, acc)
        l[-1].deadline = 4 * nb + 24
        seq += l
    save = sched.LDS_LAT
    sched.LDS_LAT = 24
    out, t = sched.schedule(seq, verbose=True)
    sched.LDS_LAT = save
    asg, _ = allocate(out, 28, 127)
    return rewrite(out, asg)


def call(p, label):
    p('s_call_b64 s[62:63], %s' % label)


def prologue():
    p = Prog()
    W = L16
    p('L_start:')
    p.extend(stamp(True))
    p.extend(stamp())
    p('s_load_dwordx4 s[4:7], s[0:1], 0')
    p('s_load_dwordx4 s[8:11], s[0:1], 16')
    p('s_sub_u32 s2, s2, %d' % NH)
    p('s_cmp_ge_u32 s2, %d' % NWG)
    p('s_cbranch_scc1 L_help')
    p('v_lshrrev_b32 v20, 6, v0')
    p('v_readfirstlane_b32 s3, v20')
    p('v_and_b32 v0, 63, v0')
    p('v_lshlrev_b32 v%d, 4, v0' % W)
    p('s_and_b32 s28, s3, 3')
    p('s_lshr_b32 s29, s3, 2')
    p('s_cmp_eq_u32 s29, 0')
    p('s_cbranch_scc1 L_gen0')
    p('s_cmp_eq_u32 s29, 2')
    p('s_cbranch_scc1 L_gen2')
    k0 = nstamp[0]
    p('s_setprio 3')
    p('v_lshrrev_b32 v22, 3, v0')
    p('v_mul_u32_u24 v22, 43, v22')
    p('s_lshl_b32 s40, s28, 5')
    p('s_and_b32 s40, s40, 32')
    p('v_xor_b32 v23, s40, v%d' % W)
    p('s_movk_i32 s41, 64')
    p('s_movk_i32 s42, 192')
    for m in range(3):
        if m:
            p('v_add_u32 v22, 344, v22')
        p('v_lshrrev_b32 v27, 2, v22')
        p('v_lshrrev_b32 v28, 7, v22')
        p('v_bitop3_b32 v27, v27, s41, v23 bitop3:0x6a')
        p('v_mad_u32_u24 v%d, v28, s42, v27' % (24 + m))
    p('s_mov_b32 s22, 55296')
    p('s_mov_b32 s23, 0x20000')
    p('s_mul_i32 s43, s28, 4608')
    p('s_mul_i32 s44, s28, 3072')
    p('s_add_u32 s44, s44, %d' % RAWM)
    p('s_mov_b32 m0, s44')
    for G in (1, 2):
        p('s_add_u32 s%d, s43, %d' % (43 + 2 * G, 18432 * G))
        p('s_add_u32 s%d, s44, %d' % (44 + 2 * G, 12288 * G))
    p('s_waitcnt lgkmcnt(0)')
    p('s_mov_b32 s20, s6')
    p('s_mov_b32 s21, s7')
    for G in range(3):
        if G:
            p('s_mov_b32 m0, s%d' % (44 + 2 * G))
        for m in range(3):
            p('buffer_load_dwordx4 v%d, s[20:23], s%d offen offset:%d lds' % (24 + m, 43 + 2 * G, 1024 * m))
    fstamp(p, 0)
    p('s_branch L_gen1b')
    p('L_gen2:')
    p('s_setprio 2')
    p('v_lshrrev_b32 v22, 2, v0')
    p('v_mul_u32_u24 v22, 43, v22')
    p('s_and_b32 s48, s28, 1')
    p('s_lshl_b32 s43, s48, 1')
    p('s_movk_i32 s42, 192')
    p('s_movk_i32 s26, 18432')
    p('s_movk_i32 s47, 3072')
    p('s_cmp_lt_u32 s28, 2')
    p('s_cselect_b32 s42, 576, s42')
    p('s_cselect_b32 s43, s43, 0')
    p('s_cselect_b32 s26, 55296, s26')
    p('s_cselect_b32 s47, 9216, s47')
    p('s_cselect_b32 s39, 384, 0')
    p('s_mov_b32 s27, 0x20000')
    p('s_movk_i32 s41, 32')
    for m in range(3):
        if m:
            p('v_add_u32 v22, 688, v22')
        p('v_lshrrev_b32 v27, 5, v22')
        p('v_lshrrev_b32 v28, 7, v22')
        p('v_bitop3_b32 v27, v27, s41, v%d bitop3:0x6a' % W)
        p('v_xor_b32 v29, s43, v28')
        p('v_mad_u32_u24 v27, v29, s42, v27')
        p('v_mul_u32_u24 v28, 0xc0, v28')
        p('v_sub_u32 v%d, v27, v28' % (140 + m))
    p('s_mul_i32 s40, s48, s47')
    p('s_add_u32 s39, s39, s40')
    p('s_lshl_b32 s37, s47, 1')
    p('s_lshr_b32 s38, s28, 1')
    p('s_mul_i32 s38, s38, 18432')
    p('s_mul_i32 s40, s48, 3072')
    p('s_add_u32 s38, s38, s40')
    p('s_add_u32 s38, s38, %d' % RAWV)
    p('v_and_b32 v20, 15, v0')
    p('v_lshrrev_b32 v21, 4, v0')
    p('v_and_b32 v25, 3, v0')
    p('s_and_b32 s44, s28, 1')
    p('s_lshr_b32 s45, s28, 1')
    p('s_lshl_b32 s41, s44, 3')
    FAa, FBa, FDW = 132, 133, 134
    p('v_and_b32 v22, 1, v0')
    p('v_xor_b32 v24, s44, v22')
    p('v_lshlrev_b32 v22, 4, v22')
    p('v_lshl_add_u32 v22, v24, 1, v22')
    p('v_and_b32 v23, 12, v0')
    p('v_bfe_u32 v24, v0, 1, 1')
    p('v_add3_u32 v22, v22, v23, v24')
    p('v_bfe_u32 v23, v0, 3, 1')
    p('v_lshlrev_b32 v23, 1, v23')
    p('v_xor_b32 v23, v23, v21')
    p('s_mov_b32 s46, %d' % RAWV)
    p('v_lshl_add_u32 v23, v23, 4, s46')
    p('s_movk_i32 s40, 192')
    p('v_mad_u32_u24 v%d, v22, s40, v23' % FAa)
    p('v_bfe_u32 v22, v0, 2, 2')
    p('v_lshl_add_u32 v22, v21, 3, v22')
    p('v_xor_b32 v23, s45, v21')
    p('v_and_b32 v23, 1, v23')
    p('v_lshlrev_b32 v23, 5, v23')
    p('v_mad_u32_u24 v22, v22, s40, v23')
    p('v_lshl_add_u32 v22, v25, 3, v22')
    p('v_add_u32 v%d, %d, v22' % (FBa, RAWO))
    p('s_lshl_b32 s46, s45, 4')
    p('s_add_u32 s47, s41, %d' % WV)
    p('v_lshl_add_u32 v24, v21, 8, s47')
    p('s_movk_i32 s41, %d' % WVJ)
    p('v_lshrrev_b32 v26, 2, v0')
    p('v_and_b32 v26, 8, v26')
    for t in range(3):
        p('v_add_u32 v22, s46, v20')
        p('v_mul_u32_u24 v23, 43, v22')
        p('v_lshrrev_b32 v23, 8, v23')
        p('v_mad_u32_u24 v22, v22, s41, v24')
        p('v_xor_b32 v27, v26, v23')
        p('v_lshl_add_u32 v22, v27, 4, v22')
        p('v_mul_u32_u24 v23, %d, v23' % (6 * WVJ))
        p('v_sub_u32 v%d, v22, v23' % (FDW + t))
        if t < 2:
            p('s_add_u32 s46, s46, 32')
    p('s_cmp_lt_u32 s28, 2')
    p('s_waitcnt lgkmcnt(0)')
    p('s_cselect_b32 s24, s6, s8')
    p('s_cselect_b32 s25, s7, s9')
    for G in range(3):
        p('s_mov_b32 m0, s38')
        p('s_add_u32 s38, s38, 6144')
        for m in range(3):
            p('buffer_load_dwordx4 v%d, s[24:27], s39 offen offset:%d lds' % (140 + m, 1024 * m))
        p('s_add_u32 s39, s39, s37')
    fstamp(p, 0)
    p.extend(stamp())
    p('s_barrier')
    p.extend(stamp())
    p('s_branch L_gen2b')
    k2 = nstamp[0]
    nstamp[0] = k0
    p('L_gen0:')
    if WARM:
        p('s_mov_b64 exec, 0')
        p('s_cmp_eq_u32 s28, 0')
        p('s_cbranch_scc1 L_h0')
        p('s_cmp_eq_u32 s28, 1')
        p('s_cbranch_scc1 L_h1')
        p('s_cmp_eq_u32 s28, 2')
        p('s_cbranch_scc1 L_h2')
        p('s_branch L_h3')
        p('L_hopret:')
        p('s_mov_b64 exec, -1')
    p('s_branch L_gen0b')
    p('L_help:')
    if NH:
        p('s_cmp_lt_u32 s2, %d' % (0x100000000 - NH))
        p('s_cbranch_scc1 L_end')
    else:
        p('s_endpgm')
    if NH:
        p('s_getpc_b64 s[44:45]')
        p('L_pch:')
        p('s_sub_u32 s44, s44, L_pch-L_start')
        p('s_subb_u32 s45, s45, 0')
        p('v_lshlrev_b32 v1, 7, v0')
        p('v_min_u32 v24, L_fin-L_start, v1')
        p('v_mov_b32 v25, s45')
        p('v_add_co_u32 v24, vcc, s44, v24')
        p('v_addc_co_u32 v25, vcc, 0, v25, vcc')
        p('global_load_dword v26, v[24:25], off')
        p('s_mov_b32 s22, 55296')
        p('s_mov_b32 s23, 0x20000')
        p('s_movk_i32 s26, 18432')
        p('s_mov_b32 s27, 0x20000')
        p('v_subrev_u32 v2, %d, v1' % (448 * 128))
        p('s_waitcnt lgkmcnt(0)')
        p('s_mov_b32 s20, s6')
        p('s_mov_b32 s21, s7')
        p('s_mov_b32 s24, s8')
        p('s_mov_b32 s25, s9')
        p('buffer_load_dword v27, v1, s[20:23], 0 offen')
        p('buffer_load_dword v28, v2, s[24:27], 0 offen')
        p('s_endpgm')
    p('L_gen1b:')
    win_base(p)
    p('v_lshrrev_b32 v22, 2, v0')
    p('v_mul_u32_u24 v22, 43, v22')
    p('v_lshrrev_b32 v22, 7, v22')
    p('s_mov_b32 s41, %d' % (GENJ - 192))
    p('v_mad_u32_u24 v145, v22, s41, v%d' % W)
    p('s_mul_i32 s40, s28, 576')
    p('s_add_u32 s40, s40, %d' % XLT)
    p('s_mov_b32 m0, s40')
    p('s_waitcnt lgkmcnt(0)')
    p('s_mov_b32 s12, s4')
    p('s_mov_b32 s13, s5')
    p('s_bfm_b64 exec, 36, 0')
    p('buffer_load_dwordx4 v145, s[12:15], s%d offen lds' % sBASE0)
    p('s_mov_b64 exec, -1')
    AE, AO, BE, BO, FD = 128, 129, 130, 131, 132
    p('s_and_b32 s44, s28, 1')
    p('s_lshr_b32 s45, s28, 1')
    p('v_lshrrev_b32 v21, 4, v0')
    p('v_and_b32 v22, 3, v0')
    p('v_bfe_u32 v23, v0, 2, 2')
    p('v_lshl_add_u32 v22, v23, 3, v22')
    p('v_lshlrev_b32 v23, 1, v23')
    p('v_and_b32 v23, 2, v23')
    p('v_xor_b32 v23, v23, v21')
    p('v_lshlrev_b32 v23, 4, v23')
    p('s_movk_i32 s40, 384')
    p('v_mad_u32_u24 v22, v22, s40, v23')
    p('v_and_b32 v23, 2, v0')
    p('v_lshlrev_b32 v23, 5, v23')
    p('v_add_u32 v24, v22, v23')
    p('v_sub_u32 v25, v22, v23')
    p('s_mul_i32 s46, s44, 1536')
    p('s_add_u32 s46, s46, %d' % RAWM)
    p('v_add_u32 v%d, s46, v24' % AE)
    p('v_add_u32 v%d, s46, v25' % AO)
    p('s_mul_i32 s46, s45, 1536')
    p('s_add_u32 s46, s46, %d' % RAWM)
    p('v_add_u32 v%d, s46, v24' % BE)
    p('v_add_u32 v%d, s46, v25' % BO)
    p('s_mul_i32 s46, s45, 3072')
    p('s_lshl_b32 s47, s44, 3')
    p('s_add_u32 s46, s46, s47')
    img_addr(p, 22, 22)
    p('v_add_u32 v%d, s46, v22' % FD)
    p('s_mov_b32 s49, %s' % CS_HEX)
    p('s_setprio %d' % P_FM)
    p('s_waitcnt vmcnt(1)')
    p.extend(stamp())
    p('s_barrier')
    p.extend(stamp())

    def postM(a, t, acc):
        q = Prog()
        for k in range(4):
            q('v_mul_f32 %s, s49, %s' % (acc[k], acc[k]))
        q.l.append(cvt(acc[0], acc[0], acc[1]))
        q.l.append(cvt(acc[1], acc[2], acc[3]))
        q('ds_write_b64 v%d, %s offset:%d' % (FD, acc[0:2], 6144 * t + 1024 * a))
        return q.l
    p.extend(fold_body(
        lambda a, ks, r: [Ins('ds_read_b128 %s, v%d offset:%d' % (r, AO if ks & 1 else AE, 12288 * a + 64 * ks))],
        lambda t, ks, r: [Ins('ds_read_b128 %s, v%d offset:%d' % (r, BE if ks & 1 else BO, 12288 * t + 64 * (3 + ks)))],
        postM, 'fm'))
    p('s_waitcnt vmcnt(0)')
    count(p, 4, 22)
    p.extend(stamp())
    p('s_setprio 1')
    if LONE:
        p('s_endpgm')
    call(p, 'L_sub_xoff')
    poll(p, 4, 4, 'L_pollM1', 22)
    p.extend(stamp())
    p('L_g12:')
    call(p, 'L_sub_xdma')
    p('s_setprio 0')
    call(p, 'L_sub_addr')
    p('s_waitcnt vmcnt(%d)' % PREW)
    p('s_branch L_go')
    nstamp[0] = k2
    p('L_pad:')
    p('L_h2:')
    if WARM:
        p('s_branch L_hopret')
    p('L_gen2b:')
    p('s_setprio 1')
    win_base(p)
    p('s_mov_b32 s12, s4')
    p('s_mov_b32 s13, s5')
    call(p, 'L_sub_xoff')
    p('s_setprio 3')
    p('s_waitcnt vmcnt(0)')
    count(p, 12, 22)
    poll(p, 12, 4, 'L_pollV', 22)
    fstamp(p, 2)
    p('s_setprio %d' % P_FW)

    def postW(a, t, acc):
        return [cvt(acc[0], acc[0], acc[1]), cvt(acc[1], acc[2], acc[3]),
                Ins('ds_write_b64 v%d, %s offset:%d' % (FDW + t, acc[0:2], 1024 * a))]
    p.extend(fold_body(
        lambda a, ks, r: [Ins('ds_read_b128 %s, v%d offset:%d' % (r, FAa, 6144 * a + 64 * ks))],
        lambda t, ks, r: [Ins('ds_read_b64_tr_b16 %s, v%d offset:%d' % (r[2 * xx:2 * xx + 2], FBa,
                                                                        6144 * ks + 768 * xx + 64 * t))
                          for xx in range(2)],
        postW, 'fw'))
    count(p, 8, 22)
    if not USEGATE:
        count(p, 0, 22)
    p.extend(stamp())
    if LONE:
        p('s_endpgm')
    p('s_setprio 1')
    poll(p, 4, 4, 'L_pollM2', 22)
    poll(p, 8, 4, 'L_pollW', 22)
    p.extend(stamp())
    p('s_branch L_g12')
    nstamp[0] = k0
    if WARM:
        p('L_h0:')
        p('s_branch L_hopret')
    p('L_gen0b:')
    p('v_and_b32 v23, 31, v0')
    p('v_lshlrev_b32 v23, 2, v23')
    p('v_add_u32 v23, %d, v23' % FLG)
    p('v_mov_b32 v22, 0')
    p('ds_write_b32 v23, v22')
    win_base(p)
    p('s_waitcnt lgkmcnt(0)')
    p('s_mov_b32 s12, s4')
    p('s_mov_b32 s13, s5')
    p('s_getpc_b64 s[62:63]')
    p('L_pc0:')
    p('s_add_u32 s62, s62, L_g0x-L_pc0')
    p('s_addc_u32 s63, s63, 0')
    p('L_sub_xoff:')
    x_offsets(p, 22)
    p('s_setpc_b64 s[62:63]')
    p('L_g0x:')
    p('s_add_u32 s62, s62, L_g0y-L_g0x')
    p('s_addc_u32 s63, s63, 0')
    p('v_and_b32 v20, 15, v0')
    p('v_lshrrev_b32 v21, 4, v0')
    p('v_min_u32 v24, 11, v20')
    p('v_and_b32 v26, 48, v0')
    p('v_and_b32 v22, 3, v24')
    p('v_mul_u32_u24 v22, 576, v22')
    p('v_lshrrev_b32 v23, 2, v24')
    p('v_mul_u32_u24 v23, 0xc0, v23')
    p('v_add3_u32 v22, v22, v23, v26')
    p('v_add_u32 v128, %d, v22' % XLT)
    p('s_and_b32 s44, s28, 1')
    p('s_lshr_b32 s45, s28, 1')
    p('s_lshl_b32 s41, s44, 3')
    p('s_mul_i32 s40, s44, 3072')
    img_addr(p, 22, 22)
    p('v_add_u32 v129, s40, v22')
    p('v_and_b32 v25, 3, v0')
    p('v_lshlrev_b32 v22, 8, v25')
    p('v_lshrrev_b32 v23, 2, v0')
    p('v_lshlrev_b32 v27, 2, v0')
    p('v_bitop3_b32 v23, v27, 8, v23 bitop3:0x6a')
    p('v_lshl_add_u32 v22, v23, 4, v22')
    p('v_add_u32 v131, s41, v22')
    p('s_cmp_eq_u32 s45, 0')
    p('s_cselect_b32 s42, 192, 0')
    p('s_add_u32 s42, s42, s41')
    p('s_add_u32 s42, s42, %d' % UT)
    p('v_mul_u32_u24 v24, %d, v24' % SSTR)
    p('v_add3_u32 v130, v24, v26, s42')
    p('s_setprio 2')
    fstamp(p, 0)
    p.extend(stamp())
    p('s_barrier')
    p.extend(stamp())
    p('L_sub_xdma:')
    x_dma(p)
    p('s_setpc_b64 s[62:63]')
    p('L_g0y:')
    p('s_add_u32 s62, s62, L_g0z-L_g0y')
    p('s_addc_u32 s63, s63, 0')
    p('s_setprio 1')
    p('L_sub_addr:')
    main_addresses(p, 22)
    p('s_setpc_b64 s[62:63]')
    p('L_g0z:')
    p('s_setprio %d' % P_L1)
    p.extend(stamp())
    poll(p, 4, 4, 'L_pollM0', 22)
    p.extend(stamp())
    LA, LD, XL = 36, 72, 84
    for s in range(3):
        p('ds_read_b128 %s, v128 offset:%d' % (vr(XL + 4 * s), 64 * s))
    p('s_cmp_lg_u32 s45, 0')
    p('s_cbranch_scc1 L_L1u')
    for s in range(3):
        for t in range(3):
            p('ds_read_b128 %s, v129 offset:%d' % (vr(LA + 12 * t + 4 * s), 6144 * t + 1024 * s))
    p('s_branch L_L1c')
    p('L_L1u:')
    p.l.append(reset_lgkm())
    for s in range(3):
        for t in range(3):
            for x in range(2):
                p('ds_read_b64_tr_b16 %s, v131 offset:%d' % (vr(LA + 12 * t + 4 * s + 2 * x, 2),
                                                             6144 * s + 3072 * x + 1024 * t))
    p('L_L1c:')
    p('v_mov_b32 v22, %d' % FLG)
    p('v_mov_b32 v23, 1')
    for s in range(3):
        p('s_waitcnt lgkmcnt(%d)' % (3 * (2 - s)))
        for t in range(3):
            p.l.append(Ins('%s %s, %s, %s, %s' % (MF16, vr(LD + 4 * t), vr(LA + 12 * t + 4 * s), vr(XL + 4 * s),
                                                  '0' if s == 0 else vr(LD + 4 * t))))
    for t in range(3):
        p('v_cvt_pk_bf16_f32 v%d, v%d, v%d' % (LD + 4 * t, LD + 4 * t, LD + 4 * t + 1))
        p('v_cvt_pk_bf16_f32 v%d, v%d, v%d' % (LD + 4 * t + 1, LD + 4 * t + 2, LD + 4 * t + 3))
        p('ds_write_b64 v130, %s offset:%d' % (vr(LD + 4 * t, 2), 64 * t))
    p('s_mov_b64 exec, 1')
    p('ds_add_u32 v22, v23')
    p('s_mov_b64 exec, -1')
    fstamp(p, 2)
    p('L_go:')
    return p.l


def mf(d, a, b, first):
    return Ins('%s %s, %s, %s, %s' % (MF16, d, a, b, '0' if first else d))


def cvt(d, a, b):
    return Ins('v_cvt_pk_bf16_f32 %s, %s, %s' % (d, a, b))


def xred(p, op, a, tag):
    t = VReg('xr' + tag, 1)
    p('v_mov_b32 %s, %s' % (t, a))
    p('v_permlane32_swap_b32 %s, %s' % (a, t))
    p('%s %s, %s, %s' % (op, a, a, t))
    p('v_mov_b32 %s, %s' % (t, a))
    p('v_permlane16_swap_b32 %s, %s' % (a, t))
    p('%s %s, %s, %s' % (op, a, a, t))


def rowred(p, op, d, z):
    p('%s_dpp %s, %s, %s row_ror:8 row_mask:0xf bank_mask:0xf' % (op, d, z, z))
    for k in (4, 2, 1):
        p('%s_dpp %s, %s, %s row_ror:%d row_mask:0xf bank_mask:0xf' % (op, d, d, d, k))


def window(fast, withL, tag):
    V = lambda n, k=4: VReg(tag + n, k)
    XF = [[V('xf%d_%d' % (t, s)) for s in range(3)] for t in range(4)]
    EA = [V('ea%d' % s) for s in range(3)]
    E = [V('e%d' % t) for t in range(4)]
    W1 = [V('mt%d' % k) for k in range(18)]
    W2 = [V('wv%d' % k) for k in range(18)]
    W2s = [[V('wv%d_%d' % (q, k)) for k in range(18)] for q in range(2)] + [W2] if ORDER in 'ef' else [W2] * 3
    if ORDER == 'f':
        W2s[1] = W2
    TB = [[V('tb%d_%d' % (q, s)) for s in range(3)] for q in range(3)]
    S = [[V('s%d_%d' % (q, k)) for k in range(3)] for q in range(3)]
    PB = [[V('pb%d_%d' % (q, k)) for k in range(2)] for q in range(4)]
    XT = [[V('xt%d_%d' % (c, k)) for k in range(2)] for c in range(6)]
    YB = [[V('yb%d_%d' % (q, s)) for s in range(3)] for q in range(3)]
    eL = [V('el%d' % q, 1) for q in range(3)]
    sums = [V('sum%d' % q, 1) for q in range(3)]
    nt = 4 if withL else 3
    ZS = []

    def reads():
        p = Prog()
        for t in range(3):
            for s in range(3):
                p('ds_read_b128 %s, %s offset:%d' % (XF[t][s], aX, 3072 * t + 64 * s))
        for s in range(3):
            p('ds_read_b128 %s, %s offset:%d' % (EA[s], aE, 64 * s))
            if withL:
                p('ds_read_b128 %s, %s offset:%d' % (XF[3][s], aX3, 64 * s))
        for k in range(18):
            p('ds_read_b128 %s, %s offset:%d' % (W1[k], aW, MT + 1024 * k))
        for c in range(6):
            a = aT0 if c % 2 == 0 else aT1
            for kt in range(3):
                p('ds_read_b64_tr_b16 %s, %s offset:%d' % (XT[c][kt >> 1][2 * (kt & 1):2 * (kt & 1) + 2], a,
                                                           3072 * kt + 64 * (c >> 1)))
            p('ds_read_b64_tr_b16 %s, %s offset:%d' % (XT[c][1][2:4], aT3, 32 * c))
        gate = []
        if withL and USEGATE:
            fa, fv = V('fa', 1), V('fv', 1)
            p('v_mov_b32 %s, %d' % (fa, FLG))
            p.l[-1].late = True
            p('ds_read_b32 %s, %s offset:8' % (fv, fa))
            p('v_readfirstlane_b32 s46, %s' % fv)
            p('s_cmp_lt_u32 s46, 4')
            p('s_cbranch_scc1 L_waitW')
            p.l[-1].rset.add(('v', fv.base))
            gate = [p.l[-1]]
            GATE.append((fa, fv))
        seen = []
        for ws in W2s:
            if ws in seen:
                continue
            seen.append(ws)
            for k in range(18):
                p('ds_read_b128 %s, %s offset:%d' % (ws[k], aW, WV + WVJ * (k // 3) + 1024 * (k % 3)))
                p.l[-1].after = gate
                p.l[-1].slack = WSLACK
        return p.l

    def T(qs):
        out = []
        for sp in range(3):
            for x in range(2):
                acc = {q: V('ta%d_%d_%d' % (q, sp, x)) for q in qs}
                for s in range(3):
                    for q in qs:
                        out.append(mf(acc[q], W1[(2 * sp + x) * 3 + s], XF[q][s], s == 0))
                for q in qs:
                    out.append(cvt(TB[q][sp][2 * x], acc[q][0], acc[q][1]))
                    out.append(cvt(TB[q][sp][2 * x + 1], acc[q][2], acc[q][3]))
        return out

    def Emf():
        return [mf(E[t], EA[s], XF[t][s], s == 0) for s in range(3) for t in range(nt)]

    def Lq():
        p = Prog()
        z, m, sm = V('z', 1), V('zm', 1), V('zs', 1)
        p('v_cndmask_b32 %s, %s, %s, s[%d:%d]' % (z, vNINF, E[3][1], sL48, sL48 + 1))
        for t, sg in ((0, sG0), (1, sG1), (2, sG2)):
            p('v_cndmask_b32 %s, %s, %s, s[%d:%d]' % (z, z, E[t][1], sg, sg + 1))
        rowred(p, 'v_max_f32', m, z)
        xred(p, 'v_max_f32', m, tag + 'zm')
        p('v_sub_f32 %s, %s, %s' % (z, z, m))
        p('v_exp_f32 %s, %s' % (z, z))
        rowred(p, 'v_add_f32', sm, z)
        if PAIRZ:
            ZS.extend([z, sm])
            return p.l
        xred(p, 'v_add_f32', sm, tag + 'zs')
        p('v_rcp_f32 %s, %s' % (sm, sm))
        return p.l + Lq2(z, sm)

    def Lq2(z, sm):
        p = Prog()
        p('v_mul_f32 %s, %s, %s' % (z, z, sm))
        p('v_cvt_pk_bf16_f32 %s, %s, %s' % (z, z, z))
        p('ds_write_b16 %s, %s offset:%d' % (aPSw, z, PS - SCR))
        w = p.l[-1]
        p('ds_read2_b64 %s, %s offset0:72 offset1:76' % (PB[3][0], aPSr))
        p.l[-1].after = [w]
        p('ds_read2_b64 %s, %s offset0:80 offset1:84' % (PB[3][1], aPSr))
        p.l[-1].after = [w]
        return p.l

    def keyL():
        return [Ins('v_cndmask_b32 %s, %s, %s, s[%d:%d]' % (eL[q], vNINF, E[q][0], sG0, sG0 + 1)) for q in range(3)]

    def Smf(q):
        return [mf(S[q][k], XF[k][s], TB[q][s], s == 0) for s in range(3) for k in range(3)]

    def soft(q):
        p = Prog()
        v = [S[q][k][r] for k in range(3) for r in range(4)] + [str(eL[q])]
        if not fast:
            m = V('m%d' % q, 1)
            p('v_max3_f32 %s, %s, %s, %s' % (m, v[12], v[0], v[1]))
            for k in range(2, 12, 2):
                p('v_max3_f32 %s, %s, %s, %s' % (m, m, v[k], v[k + 1]))
            xred(p, 'v_max_f32', m, tag + 'm%d' % q)
            for k in range(13):
                p('v_sub_f32 %s, %s, %s' % (v[k], v[k], m))
        order = [12] + list(range(12))
        for k in order:
            p('v_exp_f32 %s, %s' % (v[k], v[k]))
        p('v_add_f32 %s, %s, %s' % (sums[q], v[12], v[0]))
        for k in range(1, 12):
            p('v_add_f32 %s, %s, %s' % (sums[q], sums[q], v[k]))
        rc = V('rc%d' % q, 1)
        if q == 0 and ZS:
            z, zs = ZS
            p('v_permlane32_swap_b32 %s, %s' % (sums[0], zs))
            p('v_add_f32 %s, %s, %s' % (sums[0], sums[0], zs))
            p('v_mov_b32 %s, %s' % (zs, sums[0]))
            p('v_permlane16_swap_b32 %s, %s' % (sums[0], zs))
            p('v_add_f32 %s, %s, %s' % (sums[0], sums[0], zs))
            p('v_rcp_f32 %s, %s' % (rc, sums[0]))
            p('v_mov_b32 %s, %s' % (zs, rc))
            p('v_permlane32_swap_b32 %s, %s' % (rc, zs))
            p.extend(Lq2(z, zs))
        else:
            xred(p, 'v_add_f32', sums[q], tag + 's%d' % q)
            p('v_rcp_f32 %s, %s' % (rc, sums[q]))
        for k in range(6):
            p('v_mul_f32 %s, %s, %s' % (v[2 * k], v[2 * k], rc))
            p('v_mul_f32 %s, %s, %s' % (v[2 * k + 1], v[2 * k + 1], rc))
            p.l.append(cvt(PB[q][k >> 2][k & 3], v[2 * k], v[2 * k + 1]))
        p('v_mul_f32 %s, %s, %s' % (v[12], v[12], rc))
        p.l.append(cvt(PB[q][1][2], v[12], '0'))
        p('v_mov_b32 %s, 0' % PB[q][1][3])
        p.l[-1].after = [p.l[-2]]
        return p.l

    def check():
        p = Prog()
        hi, lo = V('hi', 1), V('lo', 1)
        p('v_max3_u32 %s, %s, %s, %s' % (hi, sums[0], sums[1], sums[2]))
        p('v_min3_u32 %s, %s, %s, %s' % (lo, sums[0], sums[1], sums[2]))
        p('v_cmp_lt_u32 vcc, 0x5f800000, %s' % hi)
        p('s_mov_b64 s[%d:%d], vcc' % (sBAD, sBAD + 1))
        p('v_cmp_gt_u32 vcc, 0x1f800000, %s' % lo)
        p('s_or_b64 s[%d:%d], s[%d:%d], vcc' % (sBAD, sBAD + 1, sBAD, sBAD + 1))
        return p.l

    def Y(q):
        out = []
        for s in range(3):
            acc = [V('ya%d_%d_%d' % (q, s, x)) for x in range(2)]
            for k, x in (((0, 0), (1, 0), (0, 1), (1, 1)) if CHAIN else ((0, 0), (0, 1), (1, 0), (1, 1))):
                out.append(mf(acc[x], XT[2 * s + x][k], PB[q][k], k == 0))
            for r in range(4):
                out.append(cvt(YB[q][s][r], acc[0][r], acc[1][r]))
        return out

    def YLq():
        out = []
        ws = []
        for s in range(3):
            acc = [V('yl%d_%d' % (s, x)) for x in range(2)]
            for k, x in (((0, 0), (1, 0), (0, 1), (1, 1)) if CHAIN else ((0, 0), (0, 1), (1, 0), (1, 1))):
                out.append(mf(acc[x], PB[3][k], XT[2 * s + x][k], k == 0))
            y = V('ylc%d' % s, 1)
            out.append(cvt(y, acc[0][0], acc[1][0]))
            out.append(Ins('ds_write_b32 %s, %s offset:%d' % (aYLw, y, YL - SCR + 64 * s)))
            ws.append(out[-1])
        one = V('one', 1)
        out.append(Ins('v_mov_b32 %s, 1' % one))
        out[-1].after = [ws[0]]
        out.append(Ins('ds_write_b32 %s, %s' % (aFw, one)))
        out[-1].after = ws
        return out

    def O(q):
        out = []
        OB = [V('ob%d_%d' % (q, r)) for r in range(4)]
        for jj in range(3):
            acc = [V('oa%d_%d_%d' % (q, jj, x)) for x in range(2)]
            for s, x in ([(s, x) for x in range(2) for s in range(3)] if CHAIN else
                         [(s, x) for s in range(3) for x in range(2)]):
                out.append(mf(acc[x], YB[q][s], W2s[q][(2 * jj + x) * 3 + s], s == 0))
            for r in range(4):
                out.append(cvt(OB[r][jj], acc[0][r], acc[1][r]))
        for r in range(4):
            T0 = 16 * q + 4 * r
            row0 = T0 // 7
            thr = min(4, 7 * (row0 + 1) - T0)
            out.append(Ins('buffer_store_dwordx3 %s, %s, s[16:19], s%d offen offset:%d %s'
                           % (OB[r][0:3], vS[thr], sROW + row0, 192 * (T0 - 7 * row0), STFLAG)))
        return out

    L = (lambda f: f()) if withL else (lambda f: [])
    seq = reads()
    if ORDER == 'a':
        seq += T([0]) + Emf() + keyL() + L(Lq) + Smf(0) + soft(0) + T([1]) + Smf(1) + soft(1) + T([2]) + Smf(2) + soft(2)
        seq += Y(0) + L(YLq) + Y(1) + Y(2)
    elif ORDER == 'b':
        seq += T([0, 1]) + Emf() + keyL() + L(Lq) + Smf(0) + soft(0) + T([2]) + Smf(1) + soft(1) + Smf(2) + soft(2)
        seq += L(YLq) + Y(0) + Y(1) + Y(2)
    elif ORDER == 'c':
        seq += T([0, 1, 2]) + Emf() + keyL() + L(Lq) + Smf(0) + soft(0) + Smf(1) + soft(1) + Smf(2) + soft(2)
        seq += L(YLq) + Y(0) + Y(1) + Y(2)
    elif ORDER == 'd':
        seq += Emf() + keyL() + L(Lq) + T([0]) + Smf(0) + soft(0) + T([1]) + Smf(1) + soft(1) + T([2]) + Smf(2) + soft(2)
        seq += Y(0) + L(YLq) + Y(1) + Y(2)
    elif ORDER == 'p':
        sf = [None] * 3
        seq += Emf() + keyL() + L(Lq) + T([0]) + Smf(0)
        sf[0] = soft(0)
        seq += sf[0] + T([1]) + Smf(1)
        sf[1] = soft(1)
        seq += sf[1] + T([2]) + Smf(2)
        sf[2] = soft(2)
        seq += sf[2]
        ys = Y(0) + L(YLq) + Y(1) + Y(2)
        need = sf[0] + sf[1]
        k = [n for n, i in enumerate(sf[2]) if i.op == 'v_rcp_f32'][0]
        need += sf[2][:k + 1] if DRAIN == 1 else sf[2] if DRAIN == 2 else sf[2][:13]
        ys[0].after = [i for i in need if i.is_valu()]
        ys[0].phase = True
        seq += ys
    def nmf():
        return sum(1 for i in seq if i.kind == 'mfma') - (3 if withL and PRE else 0)

    def Oq(q):
        o = O(q)
        if NOST:
            o = [i for i in o if i.kind != 'vstore']
        nb = nmf() + 18
        ns = 0
        for i in o:
            if i.kind == 'vstore':
                i.deadline = 4 * nb + STD0 + STGAP * ns
                ns += 1
        return o

    def YLd():
        y = L(YLq)
        for i in y:
            if i.kind == 'ds_write':
                i.deadline = 4 * (nmf() + 12) + 40
        return y

    def CK():
        if not fast:
            return []
        ck = check()
        ck[-1].deadline = 4 * nmf() + 30
        return ck
    if ORDER in 'ef':
        seq += Emf() + keyL() + L(Lq) + T([0]) + Smf(0) + soft(0) + T([1]) + Smf(1) + soft(1) + T([2]) + Smf(2) + soft(2)
        for tok in EORD:
            seq += {'a': lambda: Y(0), 'b': lambda: Y(1), 'c': lambda: Y(2) + CK(), 'l': YLd,
                    '0': lambda: Oq(0), '1': lambda: Oq(1), '2': lambda: Oq(2)}[tok]()
    else:
        nb = nmf()
        for i in seq:
            if i.kind == 'ds_write':
                i.deadline = 4 * nb
        seq += CK()
        for q in range(3):
            seq += Oq(q)
    pre = []
    if withL and PRE:
        early = set(EA) | set(XF[3]) | set(W1[:PRE]) | {E[3]}
        rest = []
        for i in seq:
            wb = {VReg.all[r] for k, r in i.wset if k == 'v' and r >= VBASE}
            (pre if wb and wb <= early else rest).append(i)
        seq = rest
    return pre, seq, W2


def ltail(W2):
    p = Prog()
    YL2 = [VReg('yl2_%d' % s, 4) for s in range(3)]
    f = VReg('fl', 2)
    aFr, aYLr, vOL, t1, t2 = [VReg(n, 1) for n in 'aFr aYLr vOL t1 t2'.split()]
    p('v_add_u32 %s, -8, %s' % (aFr, aFw))
    p('s_mul_i32 s41, s28, %d' % SSTR)
    p('s_add_u32 s41, s41, %d' % YL)
    p('v_and_b32 %s, 48, v0' % t1)
    p('v_bfe_u32 %s, v0, 2, 2' % t2)
    p('v_min_u32 %s, 2, %s' % (t2, t2))
    p('v_mul_u32_u24 %s, %d, %s' % (t2, 4 * SSTR, t2))
    p('v_add3_u32 %s, %s, %s, s41' % (aYLr, t1, t2))
    p('L_poll2:')
    p('ds_read_b64 %s, %s' % (f, aFr))
    for s in range(3):
        p('ds_read_b128 %s, %s offset:%d' % (YL2[s], aYLr, 64 * s))
    p('s_mov_b32 s42, %d' % ((GENJ - 192) // 16))
    p('v_mul_lo_u32 %s, %s, s42' % (vOL, t1))
    p('v_add_u32 %s, %s, %s' % (vOL, vOL, vS[4]))
    p('s_waitcnt lgkmcnt(0)')
    p('v_and_b32 %s, %s, %s' % (f[0], f[0], f[1]))
    p('v_readfirstlane_b32 s40, %s' % f[0])
    p('s_cmp_eq_u32 s40, 0')
    p('s_cbranch_scc1 L_poll2')
    acc = [VReg('ola%d' % j, 4) for j in range(6)]
    ob = VReg('olb', 4)
    for s in range(3):
        for j in range(6):
            p.l.append(mf(acc[j], YL2[s], W2[3 * j + s], s == 0))
    for jj in range(3):
        p.l.append(cvt(ob[jj], acc[2 * jj][0], acc[2 * jj + 1][0]))
    p('buffer_store_dwordx3 %s, %s, s[16:19], s%d offen %s' % (ob[0:3], vOL, sBASE0, STFLAG))
    return p.l


def build():
    pro = prologue()
    pre, seq, W2 = window(FAST, True, 'f')
    main, t = sched.schedule(seq, slack=SLACK, verbose=True)
    pa, pv = VReg('pa', 1), VReg('pv', 1)
    q = Prog()
    q('v_mov_b32 %s, %d' % (pa, FLG))
    q('L_poll1:')
    q('ds_read_b32 %s, %s' % (pv, pa))
    q('s_waitcnt lgkmcnt(0)')
    q('v_readfirstlane_b32 s40, %s' % pv)
    q('s_cmp_lt_u32 s40, %d' % (4 if USEGATE else 8))
    q('s_cbranch_scc1 L_poll1')
    q.l[-1].rset.add(('v', pa.base))
    q('s_setprio 0')
    pre1 = [i for i in pre if i.kind == 'ds_read' and str(aE) + ' ' not in i.text]
    pre2 = [i for i in pre if i not in pre1]
    if PH:
        k = [n for n, i in enumerate(main) if getattr(i, 'phase', False)][0]
        j = max(n for n in range(k) if main[n].kind == 'mfma')
        main.insert(k, Ins('s_setprio %s' % PH[2]))
        main.insert(j + 1, Ins('s_setprio %s' % PH[1]))
        q.l[-1] = Ins('s_setprio %s' % PH[0])
    if PR2:
        nm = 0
        for k, i in enumerate(main):
            nm += i.kind == 'mfma'
            if nm == PR2:
                main.insert(k + 1, Ins('s_setprio 0'))
                break
        q('s_cmp_lt_u32 s3, 8')
        q('s_cbranch_scc1 L_pr')
        q('s_setprio 1')
        q('L_pr:')
    main = pre1 + q.l + stamp() + pre2 + [Ins('L_page:')] + ([Ins('L_h1:'), Ins('s_cbranch_execz L_hopret')] if WARM else []) + [Ins('s_waitcnt vmcnt(0) lgkmcnt(0)')] + ([Ins('s_barrier')] if SYNC else []) + stamp() + main
    lt = ltail(W2)
    lblocks = set()
    for i in lt:
        lblocks |= blocks_of(i)
    live = {b for b in lblocks if b in PIN or b in W2}
    asg, peak = allocate(main, LO, HI, pre=dict(PIN), liveout=live)
    asgl, pl = allocate(lt, LO, HI, pre={b: asg[b] for b in live}, liveout=lblocks)
    print('peak regs', peak + 1, file=sys.stderr)
    mainr = rewrite(main, asg)
    if USEGATE:
        k = [i for i, x in enumerate(mainr) if x.text.startswith('s_cbranch_scc1 L_waitW')][0]
        mainr.insert(k + 1, Ins('L_backW:'))
    body = pro + mainr
    body += stamp()
    p = Prog()
    p('L_mainend:')
    p('s_cmp_ge_u32 s3, 8')
    p('s_cbranch_scc1 L_tail')
    p('L_noL:')
    dbg = STAMP or AMP >= 0
    if FAST:
        if FORCESLOW:
            p('s_branch L_slow')
        else:
            p('s_cmp_lg_u64 s[%d:%d], 0' % (sBAD, sBAD + 1))
            p('s_cbranch_scc1 L_slow')
    p('L_done:')
    p('s_branch L_dbg' if dbg else 's_endpgm')
    p('L_pad2:')
    p('L_h3:')
    if WARM:
        p('s_branch L_hopret')
    p('L_tail:')
    p('s_nop 4')
    body += p.l + rewrite(lt, asgl) + [Ins('s_branch L_noL'), Ins('L_fin:')]
    if dbg:
        body += [Ins('L_dbg:')] + stamp() + stamp_dump() + [Ins('s_endpgm')]
    if USEGATE:
        fa, fv = GATE[0]
        p = Prog()
        p('L_waitW:')
        p('v_mov_b32 v%d, %d' % (asg[fv], FLG))
        p('ds_read_b32 v%d, v%d offset:8' % (asg[fv], asg[fv]))
        p('s_waitcnt lgkmcnt(0)')
        p('v_readfirstlane_b32 s46, v%d' % asg[fv])
        p('s_cmp_lt_u32 s46, 4')
        p('s_cbranch_scc1 L_waitW')
        p('s_branch L_backW')
        body += p.l
    if FAST:
        p = Prog()
        p('L_slow:')
        p('s_waitcnt vmcnt(0) lgkmcnt(0)')
        p('s_nop 7')
        call(p, 'L_sub_addr')
        _, seq2, _ = window(False, False, 'g')
        slow, _ = sched.schedule(seq2, slack=SLACK)
        asg2, _ = allocate(slow, LO, HI, pre=dict(PIN))
        body += p.l + rewrite(slow, asg2) + [Ins('s_branch L_done')]
    body = finalize(body)
    hdr = open(os.path.join(os.path.dirname(os.path.abspath(__file__)), 'header.txt')).read()
    s = hdr
    s += '; @launch grid=(%d,1,1) block=(768,1,1) lds=%d\n' % (NWG + NH, LDS)
    s += '.amdgcn_target "amdgcn-amd-amdhsa--gfx950"\n.text\n.p2align 12\nL_anchor:\n.globl %s_kernel\n.p2align 8\n' % NAME
    s += '.type %s_kernel,@function\n%s_kernel:\n' % (NAME, NAME)
    txt = render(body)
    if ALIGN:
        txt = txt.replace('L_pad:\n', 'L_pad:\n.fill ((8192-((L_pad-L_anchor)+(L_page-L_h2))%4096)%4096)/4, 4, 0xbf810000\n')
    txt = txt.replace('L_pad2:\n', '.p2align 7\n')
    s += txt
    s += 'L_end:\n    s_endpgm\n'
    s += '''.section .rodata,"a"
.p2align 6
.amdhsa_kernel %s_kernel
  .amdhsa_next_free_vgpr 168
  .amdhsa_next_free_sgpr 102
  .amdhsa_accum_offset 168
  .amdhsa_group_segment_fixed_size 0
  .amdhsa_kernarg_size 48
  .amdhsa_user_sgpr_count 2
  .amdhsa_user_sgpr_kernarg_segment_ptr 1
  .amdhsa_system_sgpr_workgroup_id_x 1
.end_amdhsa_kernel
''' % NAME
    print('main', stats(finalize(rewrite(main, asg))), 'nstamps', nstamp[0], file=sys.stderr)
    return s


if __name__ == '__main__':
    open(sys.argv[1], 'w').write(build())
```

```python
import sys, struct, math, os
sys.path.insert(0, os.path.dirname(os.path.abspath(__file__)))
from asmlib import *
import sched

NAME = 'standalone__swin_window_attn__vision'
XBYTES = 27433728
NWG = 243
MT, WV = 0, 18432
WVJ = 3072 + 48
XBUF0, XSTR = 37248, 9216
RAWM = XBUF0 + 4 * XSTR
RAWV = XBUF0 + 8 * XSTR
RAWO = RAWV + 18432
SCR = XBUF0 + 12 * XSTR
SSTR = 720
UT, YL, PS = SCR, SCR + 384, SCR + 576
XLT = SCR + 12 * SSTR
FLG = XLT + 2304
LDS = FLG + 128
ROWS = 72576
ROWJ = ROWS - 1344
GENJ = 18 * 508032
LOFF = 6 * ROWS + 6 * 192

opts = dict(a.split('=', 1) for a in sys.argv[2:] if '=' in a)
LDFLAG = opts.get('ld', '').replace('+', ' ')
STFLAG = opts.get('st', 'sc1').replace('+', ' ')
STAMP = int(opts.get('stamp', '0'))
AMP = int(opts.get('amp', '-1'))
AMPGEN = int(opts.get('ampgen', '-1'))
FAST = int(opts.get('fast', '1'))
FORCESLOW = int(opts.get('forceslow', '0'))
LONE = int(opts.get('lone', '0'))
SLACK = int(opts.get('slack', '16'))
ORDER = opts.get('order', 'd')
PREFETCH = int(opts.get('pf', '0'))
XSPLIT = int(opts.get('xsplit', '6'))
FWPRIO = int(opts.get('fwprio', '3'))
PRIO0 = int(opts.get('prio0', '0'))
NH = int(opts.get('nh', '8'))
XLTLATE = int(opts.get('xltlate', '0'))
PRE = int(opts.get('pre', '18'))
PSLEEP = int(opts.get('psleep', '0'))
P_L1 = int(opts.get('pl1', '3'))
P_FW = int(opts.get('pfw', '3'))
X1GATE = int(opts.get('x1gate', '0'))
ALIGN = int(opts.get('align', '1'))
PR2 = int(opts.get('pr2', '0'))
CHAIN = int(opts.get('chain', '1'))
STD0 = int(opts.get('std0', '20'))
STGAP = int(opts.get('stgap', '12'))
WARM = int(opts.get('warm', '1'))
PAIRZ = int(opts.get('pairz', '1')) and not int(opts.get('msum', '1'))
PH = opts.get('ph', '')
DRAIN = int(opts.get('drain', '1'))
XLTL = int(opts.get('xltl', '0'))
EORD = opts.get('eord', 'al0b1c2')
WSLACK = int(opts.get('wslack', '16'))
USEGATE = 1
PREW = int(opts.get('prew', '6'))
MSUM = int(opts.get('msum', '1'))
YLAG = int(opts.get('ylag', '60'))
XSLACK = int(opts.get('xslack', '16'))
XT0 = int(opts.get('xt0', '0'))
XTD = int(opts.get('xtd', '4'))
WV0 = int(opts.get('wv0', '0'))
WVD = int(opts.get('wvd', '8'))
LIMIT = int(opts.get('limit', '160'))
TRIES = int(opts.get('tries', '1'))
SEED0 = int(opts.get('seed', '0'))
NOISE = float(opts.get('noise', '12'))
sched.RESERVE = int(opts.get('reserve', '12'))
PLAN = opts.get('plan', 't0,s0,t1,s1,t2,e,s2,a,b,c,l,0,1,2')
LATEE = int(opts.get('latee', '1'))
FIGATE = int(opts.get('figate', '0'))
NOX12 = int(opts.get('nox12', '0'))
XLTF = int(opts.get('xltf', '0'))
B0 = int(opts.get('b0', '0'))
SYNC = int(opts.get('sync', '0'))
NOST = int(opts.get('nost', '0'))
P_FM = int(opts.get('pfm', '3'))
sched.LDS_LAT = int(opts.get('ldslat', '28'))
sched.EAGER = int(opts.get('eager', '24'))
sched.OVER = int(opts.get('over', '0'))

FMT = 8 if XLTL else 4
cscale = (96.0 ** -0.5) * math.log2(math.e)
CS_HEX = '0x%08x' % struct.unpack('<I', struct.pack('<f', cscale))[0]
for idx in range(2916):
    assert (idx * 1214) >> 16 == idx // 54
for e in range(96):
    assert (e * 43) >> 8 == e // 6

MF16 = 'v_mfma_f32_16x16x32_bf16'

PIN = {}


def pin(name, r):
    v = VReg(name, 1)
    PIN[v] = r
    v.ph = r
    return v


aW, aX = pin('aW', 1), pin('aX', 2)
aT0, aT1, aT3, aYLw, aFw, aPSr, aX3, aE, aPSw, vNINF = [
    VReg(n, 1) for n in 'aT0 aT1 aT3 aYLw aFw aPSr aX3 aE aPSw vNINF'.split()]
vS = {k: VReg('vS%d' % k, 1) for k in (1, 2, 3, 4)}
LO, HI = 1, 167
L16 = 19
XOFF = 152
XL = 140
sBUF, sBASE0 = 60, 61
sROW = 30
sG0, sG1, sG2, sL48, sBAD = 50, 52, 54, 56, 58

nstamp = [0]
GATE = []
NHOP = []


def vr(b, n=4):
    return 'v[%d:%d]' % (b, b + n - 1)


def stamp(real=False):
    if not STAMP and AMP < 0:
        return []
    k = nstamp[0]
    nstamp[0] += 1
    p = Prog()
    if AMP >= 0:
        if k == 0 or k == AMP:
            p('s_memrealtime s[%d:%d]' % ((64, 65) if k == 0 else (68, 69)))
            p('s_waitcnt lgkmcnt(0)')
        return p.l
    p('%s s[%d:%d]' % ('s_memrealtime' if (real or STAMP == 3) else 's_memtime', 64 + 2 * k, 65 + 2 * k))
    p('s_waitcnt lgkmcnt(0)')
    return p.l


def fstamp(p, k):
    if STAMP != 2:
        return
    p('s_memtime s[%d:%d]' % (88 + 2 * k, 89 + 2 * k))
    p('s_waitcnt lgkmcnt(0)')


def stamp_dump():
    p = Prog()
    if AMP >= 0:
        p('s_waitcnt vmcnt(0)')
        p.extend(stamp())
        p('s_sub_u32 s68, s68, s64')
        p('s_mul_i32 s68, s68, 10')
        if AMPGEN >= 0:
            p('s_cmp_eq_u32 s29, %d' % AMPGEN)
            p('s_cselect_b32 s68, s68, 0')
        p('s_add_u32 s68, s68, 4000')
        p('s_min_u32 s68, s68, 40000')
        p('L_spin:')
        p('s_memrealtime s[66:67]')
        p('s_waitcnt lgkmcnt(0)')
        p('s_sub_u32 s66, s66, s64')
        p('s_cmp_lt_u32 s66, s68')
        p('s_cbranch_scc1 L_spin')
        return p.l
    if not STAMP:
        return []
    p('s_waitcnt vmcnt(0)')
    p.extend(stamp())
    p.extend(stamp(True))
    p('s_load_dwordx2 s[4:5], s[0:1], 40')
    p('s_mul_i32 s6, s2, 12')
    p('s_add_u32 s6, s6, s3')
    p('s_lshl_b32 s8, s6, 7')
    p('s_mov_b32 s6, 0x1000000')
    p('s_mov_b32 s7, 0x20000')
    p('s_getreg_b32 s9, hwreg(HW_REG_HW_ID)')
    p('s_getreg_b32 s10, hwreg(HW_REG_XCC_ID)')
    p('s_waitcnt lgkmcnt(0)')
    p('s_mov_b64 exec, 1')
    p('v_mov_b32 v1, 0')
    for k in range(nstamp[0]):
        p('v_mov_b32 v2, s%d' % (64 + 2 * k))
        p('buffer_store_dword v2, v1, s[4:7], s8 offen offset:%d' % (4 * k))
    if STAMP == 2:
        for k in range(6):
            p('v_mov_b32 v2, s%d' % (88 + 2 * k))
            p('buffer_store_dword v2, v1, s[4:7], s8 offen offset:%d' % (64 + 4 * k))
    p('v_mov_b32 v2, s9')
    p('buffer_store_dword v2, v1, s[4:7], s8 offen offset:120')
    p('v_mov_b32 v2, s10')
    p('buffer_store_dword v2, v1, s[4:7], s8 offen offset:124')
    return p.l


def x_dma(p, lo=0, hi=9):
    for n in range(lo, hi):
        r0 = (64 * n) // 84
        if n % 4 == 0 or n == lo:
            p('s_add_u32 s40, s%d, %d' % (sBUF, 1024 * (n & ~3)))
            p('s_mov_b32 m0, s40')
        p('s_add_u32 s41, s%d, %d' % (sROW, 1024 * (n & ~3) + ROWJ * r0))
        p('buffer_load_dwordx4 v%d, s[12:15], s41 offen offset:%d %s lds' % (XOFF + n, 1024 * (n & 3), LDFLAG))


def win_base(p):
    p('s_mov_b32 s14, %d' % XBYTES)
    p('s_mov_b32 s15, 0x20000')
    p('s_lshl_b32 s40, s2, 2')
    p('s_add_u32 s40, s40, s28')
    p('s_mul_i32 s41, s40, 1214')
    p('s_lshr_b32 s41, s41, 16')
    p('s_mul_i32 s41, s41, 435456')
    p('s_mul_i32 s40, s40, 1344')
    p('s_add_u32 s%d, s40, s41' % sBASE0)
    p('s_mul_i32 s40, s29, %d' % (0 if NOX12 else GENJ))
    p('s_add_u32 s%d, s40, s%d' % (sROW, sBASE0))
    p('s_add_u32 s%d, s%d, %d' % (sBASE0, sBASE0, LOFF))
    p('s_mul_i32 s%d, s3, %d' % (sBUF, XSTR))
    p('s_add_u32 s%d, s%d, %d' % (sBUF, sBUF, XBUF0))


def count(p, off, t):
    p('v_mov_b32 v%d, %d' % (t, FLG))
    p('v_mov_b32 v%d, 1' % (t + 1))
    p('s_mov_b64 exec, 1')
    p('ds_add_u32 v%d, v%d offset:%d' % (t, t + 1, off))
    p('s_mov_b64 exec, -1')


def poll(p, off, target, label, t):
    p('v_mov_b32 v%d, %d' % (t, FLG))
    p('%s:' % label)
    if PSLEEP:
        p('s_sleep %d' % PSLEEP)
    p('ds_read_b32 v%d, v%d offset:%d' % (t + 1, t, off))
    p('s_waitcnt lgkmcnt(0)')
    p('v_readfirstlane_b32 s40, v%d' % (t + 1))
    p('s_cmp_lt_u32 s40, %d' % target)
    p('s_cbranch_scc1 %s' % label)


def img_addr(p, d, t):
    p('v_lshrrev_b32 v%d, 2, v0' % t)
    p('v_bitop3_b32 v%d, v%d, 8, v0 bitop3:0x6a' % (t, t))
    p('v_lshlrev_b32 v%d, 4, v%d' % (d, t))


def x_offsets(p, t):
    sw = [XOFF, XOFF + 4, XOFF + 8]
    p('v_lshrrev_b32 v%d, 4, v0' % t)
    p('v_mul_u32_u24 v%d, 43, v%d' % (t, t))
    p('s_mov_b32 s41, 0x30')
    for m in range(3):
        if m:
            p('v_add_u32 v%d, %d, v%d' % (t + 1, 4 * m * 43, t))
            p('v_lshrrev_b32 v%d, 3, v%d' % (t + 1, t + 1))
        else:
            p('v_lshrrev_b32 v%d, 3, v%d' % (t + 1, t))
        p('v_bitop3_b32 v%d, v%d, s41, v%d bitop3:0x6a' % (sw[m], t + 1, L16))
        p('v_add_u32 v%d, 0x%x, v%d' % (t + 2 + m, ROWJ, sw[m]))
    for n in range(9):
        r0 = (64 * n) // 84
        thr = 84 * (r0 + 1) - 64 * n
        if thr >= 64:
            assert XOFF + n == sw[n % 3]
        else:
            p('s_lshl_b64 s[42:43], -1, %d' % thr)
            p('v_cndmask_b32 v%d, v%d, v%d, s[42:43]' % (XOFF + n, sw[n % 3], t + 2 + n % 3))


def main_addresses(p, t):
    g, a, c = t, t + 1, t + 2
    img_addr(p, aW.ph, a)
    p('v_lshrrev_b32 v%d, 4, v0' % g)
    p('s_movk_i32 s40, 192')
    p('v_and_b32 v%d, 3, v0' % a)
    p('v_bfe_u32 v%d, v0, 2, 2' % c)
    p('v_lshl_add_u32 v%d, v%d, 2, v%d' % (c, a, c))
    p('v_xor_b32 v%d, v%d, v%d' % (aX.ph, g, a))
    p('v_lshl_add_u32 v%d, v%d, 4, s%d' % (aX.ph, aX.ph, sBUF))
    p('v_mad_u32_u24 v%d, v%d, s40, v%d' % (aX.ph, c, aX.ph))
    p('s_mov_b32 s16, s10')
    p('s_mov_b32 s17, s11')
    p('s_mov_b32 s18, %d' % XBYTES)
    p('s_mov_b32 s19, 0x20000')


def late_addresses(V, withL):
    p = Prog()
    i, g, a, b, c, d, e, f = [V('ad' + n, 1) for n in 'igabcdef']
    p('s_movk_i32 s40, 192')
    p('v_and_b32 %s, 15, v0' % i)
    p('v_lshrrev_b32 %s, 4, v0' % g)
    p('v_and_b32 %s, 3, v0' % a)
    p('v_bfe_u32 %s, v0, 2, 2' % b)
    p('s_mul_i32 s41, s28, 576')
    p('s_mul_i32 s42, s29, 192')
    p('s_add_u32 s41, s41, s42')
    p('s_add_u32 s41, s41, %d' % XLT)
    if withL:
        p('v_lshl_add_u32 %s, %s, 4, s41' % (aX3, g))
    p('v_lshl_add_u32 %s, %s, 3, s41' % (aT3, a))
    p('v_lshlrev_b32 %s, 1, %s' % (c, b))
    p('v_xor_b32 %s, %s, %s' % (c, c, a))
    p('v_lshl_add_u32 %s, %s, 3, s%d' % (aT0, c, sBUF))
    p('v_lshl_add_u32 %s, %s, 2, %s' % (d, b, g))
    p('v_mad_u32_u24 %s, %s, s40, %s' % (aT0, d, aT0))
    p('v_xor_b32 %s, 32, %s' % (aT1, aT0))
    p('s_mul_i32 s43, s3, %d' % SSTR)
    p('s_add_u32 s43, s43, %d' % SCR)
    p('v_lshl_add_u32 %s, %s, 4, s43' % (aE, g))
    p('v_and_b32 %s, 1, v0' % e)
    p('v_mad_u32_u24 %s, %s, s40, %s' % (aE, e, aE))
    if withL:
        p('v_lshl_add_u32 %s, v0, 1, s43' % aPSw)
        p('v_lshl_add_u32 %s, %s, 3, s43' % (aPSr, g))
        p('v_lshl_add_u32 %s, %s, 2, s43' % (aYLw, i))
        p('s_lshl_b32 s44, s28, 4')
        p('s_lshl_b32 s45, s29, 2')
        p('s_add_u32 s44, s44, s45')
        p('s_add_u32 s44, s44, %d' % (FLG + 16))
        p('v_mov_b32 %s, s44' % aFw)
    p('v_mov_b32 %s, 0xff800000' % vNINF)
    p('v_mul_u32_u24 %s, 12, v0' % vS[4])
    p('v_add_u32 %s, 0x%x, %s' % (f, ROWJ, vS[4]))
    p('s_mov_b64 s[%d:%d], 0xffff' % (sG0, sG0 + 1))
    p('s_lshl_b64 s[%d:%d], s[%d:%d], 16' % (sG1, sG1 + 1, sG0, sG0 + 1))
    p('s_lshl_b64 s[%d:%d], s[%d:%d], 32' % (sG2, sG2 + 1, sG0, sG0 + 1))
    p('s_lshl_b64 s[%d:%d], 1, 48' % (sL48, sL48 + 1))
    p('v_cndmask_b32 %s, %s, %s, s[%d:%d]' % (vS[1], f, vS[4], sG0, sG0 + 1))
    p('v_cndmask_b32 %s, %s, %s, s[%d:%d]' % (vS[2], vS[1], vS[4], sG1, sG1 + 1))
    p('v_cndmask_b32 %s, %s, %s, s[%d:%d]' % (vS[3], vS[2], vS[4], sG2, sG2 + 1))
    for k in range(1, 7):
        p('s_add_u32 s%d, s%d, %d' % (sROW + k, sROW, ROWS * k))
    for x in p.l:
        x.deadline = 100
    return p.l


def fold_body(rdA, rdB, post, tag):
    A = [[VReg('%sa%d%d' % (tag, a, k), 4) for k in range(3)] for a in range(3)]
    B = [[VReg('%sb%d%d' % (tag, a, k), 4) for k in range(3)] for a in range(3)]
    seq = []
    for kind, a in (('A', 0), ('B', 0), ('B', 1), ('A', 1), ('B', 2), ('A', 2)):
        for ks in range(3):
            seq += rdA(a, ks, A[a][ks]) if kind == 'A' else rdB(a, ks, B[a][ks])
    for i in seq:
        i.slack = 1000
    nb = 0
    for a, t in ((0, 0), (0, 1), (1, 0), (1, 1), (0, 2), (1, 2), (2, 0), (2, 1), (2, 2)):
        acc = VReg('%sd%d%d' % (tag, a, t), 4)
        for ks in range(3):
            seq.append(mf(acc, A[a][ks], B[t][ks], ks == 0))
        nb += 3
        l = post(a, t, acc)
        l[-1].deadline = 4 * nb + 24
        seq += l
    save = sched.LDS_LAT
    sched.LDS_LAT = 24
    out, t = sched.schedule(seq, verbose=True)
    sched.LDS_LAT = save
    asg, _ = allocate(out, 28, 127)
    return rewrite(out, asg)


def call(p, label):
    p('s_call_b64 s[62:63], %s' % label)


def prologue():
    p = Prog()
    W = L16
    p('L_start:')
    p.extend(stamp(True))
    p.extend(stamp())
    p('s_load_dwordx4 s[4:7], s[0:1], 0')
    p('s_load_dwordx4 s[8:11], s[0:1], 16')
    p('s_sub_u32 s2, s2, %d' % NH)
    p('s_cmp_ge_u32 s2, %d' % NWG)
    p('s_cbranch_scc1 L_help')
    p('v_lshrrev_b32 v20, 6, v0')
    p('v_readfirstlane_b32 s3, v20')
    p('v_and_b32 v0, 63, v0')
    p('v_lshlrev_b32 v%d, 4, v0' % W)
    p('s_and_b32 s28, s3, 3')
    p('s_lshr_b32 s29, s3, 2')
    p('s_cmp_eq_u32 s29, 0')
    p('s_cbranch_scc1 L_gen0')
    p('s_cmp_eq_u32 s29, 2')
    p('s_cbranch_scc1 L_gen2')
    k0 = nstamp[0]
    p('s_setprio 3')
    p('v_lshrrev_b32 v22, 3, v0')
    p('v_mul_u32_u24 v22, 43, v22')
    p('s_lshl_b32 s40, s28, 5')
    p('s_and_b32 s40, s40, 32')
    p('v_xor_b32 v23, s40, v%d' % W)
    p('s_movk_i32 s41, 64')
    p('s_movk_i32 s42, 192')
    for m in range(3):
        if m:
            p('v_add_u32 v22, 344, v22')
        p('v_lshrrev_b32 v27, 2, v22')
        p('v_lshrrev_b32 v28, 7, v22')
        p('v_bitop3_b32 v27, v27, s41, v23 bitop3:0x6a')
        p('v_mad_u32_u24 v%d, v28, s42, v27' % (24 + m))
    p('s_mov_b32 s22, 55296')
    p('s_mov_b32 s23, 0x20000')
    p('s_mul_i32 s43, s28, 4608')
    p('s_mul_i32 s44, s28, 3072')
    p('s_add_u32 s44, s44, %d' % RAWM)
    p('s_mov_b32 m0, s44')
    for G in (1, 2):
        p('s_add_u32 s%d, s43, %d' % (43 + 2 * G, 18432 * G))
        p('s_add_u32 s%d, s44, %d' % (44 + 2 * G, 12288 * G))
    win_base(p)
    p('v_lshrrev_b32 v22, 2, v0')
    p('v_mul_u32_u24 v22, 43, v22')
    p('v_lshrrev_b32 v22, 7, v22')
    p('s_mov_b32 s41, %d' % (GENJ - 192))
    p('v_mad_u32_u24 v145, v22, s41, v%d' % W)
    p('s_mul_i32 s49, s28, 576')
    p('s_add_u32 s49, s49, %d' % XLT)
    def xlt():
        p('s_mov_b32 m0, s49')
        p('s_bfm_b64 exec, 36, 0')
        p('s_mov_b32 s12, s4')
        p('s_mov_b32 s13, s5')
        p('buffer_load_dwordx4 v145, s[12:15], s%d offen lds' % sBASE0)
        p('s_mov_b64 exec, -1')
    p('s_waitcnt lgkmcnt(0)')
    if XLTF:
        xlt()
    p('s_mov_b32 s20, s6')
    p('s_mov_b32 s21, s7')
    for G in range(3):
        if 1:
            p('s_mov_b32 m0, s%d' % (44 + 2 * G))
        for m in range(3):
            p('buffer_load_dwordx4 v%d, s[20:23], s%d offen offset:%d lds' % (24 + m, 43 + 2 * G, 1024 * m))
    if not XLTF:
        xlt()
    fstamp(p, 0)
    if B0:
        p('s_barrier')
    p('s_branch L_gen1b')
    p('L_gen0:')
    p('s_setprio 1')
    win_base(p)
    p('s_getpc_b64 s[62:63]')
    p('L_pc0:')
    p('s_add_u32 s62, s62, L_g0x-L_pc0')
    p('s_addc_u32 s63, s63, 0')
    p('s_waitcnt lgkmcnt(0)')
    p('s_mov_b32 s12, s4')
    p('s_mov_b32 s13, s5')
    p('L_sub_xoff:')
    x_offsets(p, 22)
    p('s_setpc_b64 s[62:63]')
    p('L_g0x:')
    p('s_add_u32 s62, s62, L_g0w-L_g0x')
    p('s_addc_u32 s63, s63, 0')
    p('L_sub_addr:')
    main_addresses(p, 22)
    p('s_setpc_b64 s[62:63]')
    p('L_g0w:')
    p('s_add_u32 s62, s62, L_gen0b-L_g0w')
    p('s_addc_u32 s63, s63, 0')
    p('v_and_b32 v20, 15, v0')
    p('v_lshrrev_b32 v21, 4, v0')
    p('v_min_u32 v24, 11, v20')
    p('v_and_b32 v26, 48, v0')
    p('v_and_b32 v22, 3, v24')
    p('v_mul_u32_u24 v22, 576, v22')
    p('v_lshrrev_b32 v23, 2, v24')
    p('v_mul_u32_u24 v23, 0xc0, v23')
    p('v_add3_u32 v22, v22, v23, v26')
    p('v_add_u32 v128, %d, v22' % XLT)
    p('s_and_b32 s44, s28, 1')
    p('s_lshr_b32 s45, s28, 1')
    p('s_lshl_b32 s41, s44, 3')
    p('s_mul_i32 s40, s44, 3072')
    img_addr(p, 22, 22)
    p('v_add_u32 v129, s40, v22')
    p('v_and_b32 v25, 3, v0')
    p('v_lshlrev_b32 v22, 8, v25')
    p('v_lshrrev_b32 v23, 2, v0')
    p('v_lshlrev_b32 v27, 2, v0')
    p('v_bitop3_b32 v23, v27, 8, v23 bitop3:0x6a')
    p('v_lshl_add_u32 v22, v23, 4, v22')
    p('v_add_u32 v131, s41, v22')
    p('s_cmp_eq_u32 s45, 0')
    p('s_cselect_b32 s42, 192, 0')
    p('s_add_u32 s42, s42, s41')
    p('s_add_u32 s42, s42, %d' % UT)
    p('v_mul_u32_u24 v24, %d, v24' % SSTR)
    p('v_add3_u32 v130, v24, v26, s42')
    fstamp(p, 0)
    if B0:
        p('s_barrier')
    p('L_sub_xdma:')
    x_dma(p, 0, XSPLIT)
    p('s_setpc_b64 s[62:63]')
    p('L_gen2:')
    if B0:
        p('s_barrier')
    if WARM:
        p('s_mov_b64 exec, 0')
        p('s_cmp_eq_u32 s28, 0')
        p('s_cbranch_scc1 L_h0')
        p('s_cmp_eq_u32 s28, 1')
        p('s_cbranch_scc1 L_h1')
        p('s_cmp_eq_u32 s28, 2')
        p('s_cbranch_scc1 L_h2')
        p('s_branch L_h3')
        p('L_hopret:')
        p('s_mov_b64 exec, -1')
    p('s_branch L_gen2b')
    p('L_help:')
    if NH:
        p('s_cmp_lt_u32 s2, %d' % (0x100000000 - NH))
        p('s_cbranch_scc1 L_end')
    else:
        p('s_endpgm')
    if NH:
        p('s_getpc_b64 s[44:45]')
        p('L_pch:')
        p('s_sub_u32 s44, s44, L_pch-L_start')
        p('s_subb_u32 s45, s45, 0')
        p('v_lshlrev_b32 v1, 7, v0')
        p('v_min_u32 v24, L_fin-L_start, v1')
        p('v_mov_b32 v25, s45')
        p('v_add_co_u32 v24, vcc, s44, v24')
        p('v_addc_co_u32 v25, vcc, 0, v25, vcc')
        p('global_load_dword v26, v[24:25], off')
        p('s_mov_b32 s22, 55296')
        p('s_mov_b32 s23, 0x20000')
        p('s_movk_i32 s26, 18432')
        p('s_mov_b32 s27, 0x20000')
        p('v_subrev_u32 v2, %d, v1' % (448 * 128))
        p('s_waitcnt lgkmcnt(0)')
        p('s_mov_b32 s20, s6')
        p('s_mov_b32 s21, s7')
        p('s_mov_b32 s24, s8')
        p('s_mov_b32 s25, s9')
        p('buffer_load_dword v27, v1, s[20:23], 0 offen')
        p('buffer_load_dword v28, v2, s[24:27], 0 offen')
        p('s_endpgm')
    p('L_gen1b:')
    AE, AO, BE, BO, FD = 128, 129, 130, 131, 132
    p('s_and_b32 s44, s28, 1')
    p('s_lshr_b32 s45, s28, 1')
    p('v_lshrrev_b32 v21, 4, v0')
    p('v_and_b32 v22, 3, v0')
    p('v_bfe_u32 v23, v0, 2, 2')
    p('v_lshl_add_u32 v22, v23, 3, v22')
    p('v_lshlrev_b32 v23, 1, v23')
    p('v_and_b32 v23, 2, v23')
    p('v_xor_b32 v23, v23, v21')
    p('v_lshlrev_b32 v23, 4, v23')
    p('s_movk_i32 s40, 384')
    p('v_mad_u32_u24 v22, v22, s40, v23')
    p('v_and_b32 v23, 2, v0')
    p('v_lshlrev_b32 v23, 5, v23')
    p('v_add_u32 v24, v22, v23')
    p('v_sub_u32 v25, v22, v23')
    p('s_mul_i32 s46, s44, 1536')
    p('s_add_u32 s46, s46, %d' % RAWM)
    p('v_add_u32 v%d, s46, v24' % AE)
    p('v_add_u32 v%d, s46, v25' % AO)
    p('s_mul_i32 s46, s45, 1536')
    p('s_add_u32 s46, s46, %d' % RAWM)
    p('v_add_u32 v%d, s46, v24' % BE)
    p('v_add_u32 v%d, s46, v25' % BO)
    p('s_mul_i32 s46, s45, 3072')
    p('s_lshl_b32 s47, s44, 3')
    p('s_add_u32 s46, s46, s47')
    img_addr(p, 22, 22)
    p('v_add_u32 v%d, s46, v22' % FD)
    p('s_mov_b32 s49, %s' % CS_HEX)
    p('s_setprio 0')
    call(p, 'L_sub_xoff')
    call(p, 'L_sub_addr')
    p('s_setprio %d' % P_FM)
    p('s_waitcnt vmcnt(%d)' % (0 if XLTF else 1))
    p.extend(stamp())
    p('s_barrier')
    p.extend(stamp())

    def postM(a, t, acc):
        q = Prog()
        for k in range(4):
            q('v_mul_f32 %s, s49, %s' % (acc[k], acc[k]))
        q.l.append(cvt(acc[0], acc[0], acc[1]))
        q.l.append(cvt(acc[1], acc[2], acc[3]))
        q('ds_write_b64 v%d, %s offset:%d' % (FD, acc[0:2], 6144 * t + 1024 * a))
        return q.l
    p.extend(fold_body(
        lambda a, ks, r: [Ins('ds_read_b128 %s, v%d offset:%d' % (r, AO if ks & 1 else AE, 12288 * a + 64 * ks))],
        lambda t, ks, r: [Ins('ds_read_b128 %s, v%d offset:%d' % (r, BE if ks & 1 else BO, 12288 * t + 64 * (3 + ks)))],
        postM, 'fm'))
    count(p, 4, 22)
    p.extend(stamp())
    p('s_waitcnt vmcnt(0)')
    count(p, 16 + 28, 22)
    p('s_setprio 1')
    if LONE:
        p('s_endpgm')
    poll(p, 4, 4, 'L_pollM1', 22)
    if FIGATE:
        poll(p, 16 + 12, 4, 'L_pollI', 22)
    p.extend(stamp())
    call(p, 'L_sub_xdma')
    call(p, 'L_sub_xdma2')
    p('s_setprio 0')
    p('s_waitcnt vmcnt(%d)' % PREW)
    p('s_branch L_go')
    nstamp[0] = k0
    p('L_pad:')
    p('L_h2:')
    if WARM:
        p('s_branch L_hopret')
    p('L_gen2b:')
    p('v_and_b32 v23, 31, v0')
    p('v_lshlrev_b32 v23, 2, v23')
    p('v_add_u32 v23, %d, v23' % FLG)
    p('v_mov_b32 v22, 0')
    p('ds_write_b32 v23, v22')
    p('v_lshrrev_b32 v22, 2, v0')
    p('v_mul_u32_u24 v22, 43, v22')
    p('s_and_b32 s48, s28, 1')
    p('s_lshl_b32 s43, s48, 1')
    p('s_movk_i32 s42, 192')
    p('s_movk_i32 s26, 18432')
    p('s_movk_i32 s47, 3072')
    p('s_cmp_lt_u32 s28, 2')
    p('s_cselect_b32 s42, 576, s42')
    p('s_cselect_b32 s43, s43, 0')
    p('s_cselect_b32 s26, 55296, s26')
    p('s_cselect_b32 s47, 9216, s47')
    p('s_cselect_b32 s39, 384, 0')
    p('s_mov_b32 s27, 0x20000')
    p('s_movk_i32 s41, 32')
    for m in range(3):
        if m:
            p('v_add_u32 v22, 688, v22')
        p('v_lshrrev_b32 v27, 5, v22')
        p('v_lshrrev_b32 v28, 7, v22')
        p('v_bitop3_b32 v27, v27, s41, v%d bitop3:0x6a' % W)
        p('v_xor_b32 v29, s43, v28')
        p('v_mad_u32_u24 v27, v29, s42, v27')
        p('v_mul_u32_u24 v28, 0xc0, v28')
        p('v_sub_u32 v%d, v27, v28' % (140 + m))
    p('s_mul_i32 s40, s48, s47')
    p('s_add_u32 s39, s39, s40')
    p('s_lshl_b32 s37, s47, 1')
    p('s_lshr_b32 s38, s28, 1')
    p('s_mul_i32 s38, s38, 18432')
    p('s_mul_i32 s40, s48, 3072')
    p('s_add_u32 s38, s38, s40')
    p('s_add_u32 s38, s38, %d' % RAWV)
    p('v_and_b32 v20, 15, v0')
    p('v_lshrrev_b32 v21, 4, v0')
    p('v_and_b32 v25, 3, v0')
    p('s_and_b32 s44, s28, 1')
    p('s_lshr_b32 s45, s28, 1')
    p('s_lshl_b32 s41, s44, 3')
    FAa, FBa, FDW = 132, 133, 134
    p('v_and_b32 v22, 1, v0')
    p('v_xor_b32 v24, s44, v22')
    p('v_lshlrev_b32 v22, 4, v22')
    p('v_lshl_add_u32 v22, v24, 1, v22')
    p('v_and_b32 v23, 12, v0')
    p('v_bfe_u32 v24, v0, 1, 1')
    p('v_add3_u32 v22, v22, v23, v24')
    p('v_bfe_u32 v23, v0, 3, 1')
    p('v_lshlrev_b32 v23, 1, v23')
    p('v_xor_b32 v23, v23, v21')
    p('s_mov_b32 s46, %d' % RAWV)
    p('v_lshl_add_u32 v23, v23, 4, s46')
    p('s_movk_i32 s40, 192')
    p('v_mad_u32_u24 v%d, v22, s40, v23' % FAa)
    p('v_bfe_u32 v22, v0, 2, 2')
    p('v_lshl_add_u32 v22, v21, 3, v22')
    p('v_xor_b32 v23, s45, v21')
    p('v_and_b32 v23, 1, v23')
    p('v_lshlrev_b32 v23, 5, v23')
    p('v_mad_u32_u24 v22, v22, s40, v23')
    p('v_lshl_add_u32 v22, v25, 3, v22')
    p('v_add_u32 v%d, %d, v22' % (FBa, RAWO))
    p('s_lshl_b32 s46, s45, 4')
    p('s_add_u32 s47, s41, %d' % WV)
    p('v_lshl_add_u32 v24, v21, 8, s47')
    p('s_movk_i32 s41, %d' % WVJ)
    p('v_lshrrev_b32 v26, 2, v0')
    p('v_and_b32 v26, 8, v26')
    for t in range(3):
        p('v_add_u32 v22, s46, v20')
        p('v_mul_u32_u24 v23, 43, v22')
        p('v_lshrrev_b32 v23, 8, v23')
        p('v_mad_u32_u24 v22, v22, s41, v24')
        p('v_xor_b32 v27, v26, v23')
        p('v_lshl_add_u32 v22, v27, 4, v22')
        p('v_mul_u32_u24 v23, %d, v23' % (6 * WVJ))
        p('v_sub_u32 v%d, v22, v23' % (FDW + t))
        if t < 2:
            p('s_add_u32 s46, s46, 32')
    p('s_cmp_lt_u32 s28, 2')
    p('s_waitcnt lgkmcnt(0)')
    p('s_cselect_b32 s24, s6, s8')
    p('s_cselect_b32 s25, s7, s9')
    p('s_setprio 2')
    fstamp(p, 0)
    p.extend(stamp())
    p('s_barrier')
    p.extend(stamp())
    for G in range(3):
        p('s_mov_b32 m0, s38')
        p('s_add_u32 s38, s38, 6144')
        for m in range(3):
            p('buffer_load_dwordx4 v%d, s[24:27], s39 offen offset:%d lds' % (140 + m, 1024 * m))
        p('s_add_u32 s39, s39, s37')
    if FIGATE:
        count(p, 16 + 12, 22)
    fstamp(p, 1)
    win_base(p)
    p('s_mov_b32 s12, s4')
    p('s_mov_b32 s13, s5')
    call(p, 'L_sub_xoff')
    call(p, 'L_sub_addr')
    p('s_setprio 3')
    p('s_waitcnt vmcnt(0)')
    count(p, 12, 22)
    poll(p, 12, 4, 'L_pollV', 22)
    fstamp(p, 2)
    p('s_setprio %d' % P_FW)

    def postW(a, t, acc):
        return [cvt(acc[0], acc[0], acc[1]), cvt(acc[1], acc[2], acc[3]),
                Ins('ds_write_b64 v%d, %s offset:%d' % (FDW + t, acc[0:2], 1024 * a))]
    p.extend(fold_body(
        lambda a, ks, r: [Ins('ds_read_b128 %s, v%d offset:%d' % (r, FAa, 6144 * a + 64 * ks))],
        lambda t, ks, r: [Ins('ds_read_b64_tr_b16 %s, v%d offset:%d' % (r[2 * xx:2 * xx + 2], FBa,
                                                                        6144 * ks + 768 * xx + 64 * t))
                          for xx in range(2)],
        postW, 'fw'))
    count(p, 8, 22)
    p.extend(stamp())
    if LONE:
        p('s_endpgm')
    poll(p, 8, 4, 'L_pollW', 22)
    p.extend(stamp())
    call(p, 'L_sub_xdma')
    call(p, 'L_sub_xdma2')
    p('s_setprio 0')
    poll(p, 4, 4, 'L_pollM2', 22)
    p('s_waitcnt vmcnt(%d)' % PREW)
    p('s_branch L_go')
    nstamp[0] = k0
    if WARM:
        p('L_h0:')
        p('s_branch L_hopret')
    p('L_gen0b:')
    p('s_add_u32 s62, s62, L_g0y-L_gen0b')
    p('s_addc_u32 s63, s63, 0')
    p('s_setprio 0')
    p('s_setprio 3')
    fstamp(p, 1)
    p.extend(stamp())
    p('s_barrier')
    p.extend(stamp())
    p('L_sub_xdma2:')
    x_dma(p, XSPLIT, 9)
    p('s_setpc_b64 s[62:63]')
    p('L_g0y:')
    p('s_setprio %d' % P_L1)
    p.extend(stamp())
    poll(p, 4, 4, 'L_pollM0', 164)
    p.extend(stamp())
    LA, LD, XL = 80, 116, 132
    p('s_cmp_lg_u32 s45, 0')
    p('s_cbranch_scc1 L_L1u')
    for s in range(3):
        for t in range(3):
            p('ds_read_b128 %s, v129 offset:%d' % (vr(LA + 12 * t + 4 * s), 6144 * t + 1024 * s))
    p('s_branch L_L1c')
    p('L_L1u:')
    p.l.append(reset_lgkm())
    for s in range(3):
        for t in range(3):
            for x in range(2):
                p('ds_read_b64_tr_b16 %s, v131 offset:%d' % (vr(LA + 12 * t + 4 * s + 2 * x, 2),
                                                             6144 * s + 3072 * x + 1024 * t))
    p('L_L1c:')
    poll(p, 16 + 28, 4, 'L_pollX', 164)
    for s in range(3):
        p('ds_read_b128 %s, v128 offset:%d' % (vr(XL + 4 * s), 64 * s))
    p('L_pre0:')
    p('v_mov_b32 v165, 1')
    for s in range(3):
        for t in range(3):
            p.l.append(Ins('%s %s, %s, %s, %s' % (MF16, vr(LD + 4 * t), vr(LA + 12 * t + 4 * s), vr(XL + 4 * s),
                                                  '0' if s == 0 else vr(LD + 4 * t))))
    for t in range(3):
        p('v_cvt_pk_bf16_f32 v%d, v%d, v%d' % (LD + 4 * t, LD + 4 * t, LD + 4 * t + 1))
        p('v_cvt_pk_bf16_f32 v%d, v%d, v%d' % (LD + 4 * t + 1, LD + 4 * t + 2, LD + 4 * t + 3))
        p('ds_write_b64 v130, %s offset:%d' % (vr(LD + 4 * t, 2), 64 * t))
    p('s_mov_b64 exec, 1')
    p('ds_add_u32 v164, v165')
    p('s_mov_b64 exec, -1')
    fstamp(p, 2)
    p('s_branch L_go2')
    p('L_go:')
    return p.l


def mf(d, a, b, first):
    return Ins('%s %s, %s, %s, %s' % (MF16, d, a, b, '0' if first else d))


def cvt(d, a, b):
    return Ins('v_cvt_pk_bf16_f32 %s, %s, %s' % (d, a, b))


def xred(p, op, a, tag):
    t = VReg('xr' + tag, 1)
    p('v_mov_b32 %s, %s' % (t, a))
    p('v_permlane32_swap_b32 %s, %s' % (a, t))
    p('%s %s, %s, %s' % (op, a, a, t))
    p('v_mov_b32 %s, %s' % (t, a))
    p('v_permlane16_swap_b32 %s, %s' % (a, t))
    p('%s %s, %s, %s' % (op, a, a, t))


def rowred(p, op, d, z):
    p('%s_dpp %s, %s, %s row_ror:8 row_mask:0xf bank_mask:0xf' % (op, d, z, z))
    for k in (4, 2, 1):
        p('%s_dpp %s, %s, %s row_ror:%d row_mask:0xf bank_mask:0xf' % (op, d, d, d, k))


def window(fast, withL, tag):
    V = lambda n, k=4: VReg(tag + n, k)
    XF = [[V('xf%d_%d' % (t, s)) for s in range(3)] for t in range(4)]
    EA = [V('ea%d' % s) for s in range(3)]
    E = [V('e%d' % t) for t in range(4)]
    W1 = [V('mt%d' % k) for k in range(18)]
    W2 = [V('wv%d' % k) for k in range(18)]
    W2s = [[V('wv%d_%d' % (q, k)) for k in range(18)] for q in range(2)] + [W2] if ORDER in 'ef' else [W2] * 3
    if ORDER == 'f':
        W2s[1] = W2
    TB = [[V('tb%d_%d' % (q, s)) for s in range(3)] for q in range(3)]
    S = [[V('s%d_%d' % (q, k)) for k in range(3)] for q in range(3)]
    PB = [[V('pb%d_%d' % (q, k)) for k in range(2)] for q in range(4)]
    XT = [[V('xt%d_%d' % (c, k)) for k in range(2)] for c in range(6)]
    YB = [[V('yb%d_%d' % (q, s)) for s in range(3)] for q in range(3)]
    eL = [V('el%d' % q, 1) for q in range(3)]
    sums = [V('sum%d' % q, 1) for q in range(3)]
    nt = 4 if withL else 3
    ZS = []
    state = {'ones': False, 'nsum': 0, 'ylw': []}

    def mkgate(p, off, name, sr):
        fv = V('fv' + name, 1)
        p('v_mov_b32 %s, %d' % (fv, FLG))
        p.l[-1].late = True
        p('ds_read_b32 %s, %s offset:%d' % (fv, fv, off))
        p('v_readfirstlane_b32 s%d, %s' % (sr, fv))
        p('s_cmp_lt_u32 s%d, 4' % sr)
        p('s_cbranch_scc1 L_wait%s' % name)
        p.l[-1].rset.add(('v', fv.base))
        GATE.append((fv, off, name, sr))
        return [p.l[-1]]

    def reads():
        p = Prog()
        for t in range(3):
            for s in range(3):
                p('ds_read_b128 %s, %s offset:%d' % (XF[t][s], aX, 3072 * t + 64 * s))
        g1 = mkgate(p, 0, 'E', 47) if withL and LATEE else []
        for s in range(3):
            p('ds_read_b128 %s, %s offset:%d' % (EA[s], aE, 64 * s))
            p.l[-1].after = g1
            if withL:
                p('ds_read_b128 %s, %s offset:%d' % (XF[3][s], aX3, 64 * s))
                p.l[-1].after = g1
        for k in range(18):
            p('ds_read_b128 %s, %s offset:%d' % (W1[k], aW, MT + 1024 * k))
        for c in range(6):
            a = aT0 if c % 2 == 0 else aT1
            for kt in range(3):
                p('ds_read_b64_tr_b16 %s, %s offset:%d' % (XT[c][kt >> 1][2 * (kt & 1):2 * (kt & 1) + 2], a,
                                                           3072 * kt + 64 * (c >> 1)))
            p('ds_read_b64_tr_b16 %s, %s offset:%d' % (XT[c][1][2:4], aT3, 32 * c))
            p.l[-1].after = g1
            for n, i in enumerate(p.l[-4:]):
                i.slack = XSLACK
                if XT0 and withL:
                    i.deadline = XT0 + XTD * (4 * c + n)
        gate = mkgate(p, 8, 'W', 46) if withL else []
        seen = []
        for ws in W2s:
            if ws in seen:
                continue
            seen.append(ws)
            for k in range(18):
                p('ds_read_b128 %s, %s offset:%d' % (ws[k], aW, WV + WVJ * (k // 3) + 1024 * (k % 3)))
                p.l[-1].after = gate
                p.l[-1].slack = WSLACK
                if WV0 and withL and ws is W2s[0]:
                    p.l[-1].deadline = WV0 + WVD * k
        return p.l

    def T(qs):
        out = []
        for sp in range(3):
            for x in range(2):
                acc = {q: V('ta%d_%d_%d' % (q, sp, x)) for q in qs}
                for s in range(3):
                    for q in qs:
                        out.append(mf(acc[q], W1[(2 * sp + x) * 3 + s], XF[q][s], s == 0))
                for q in qs:
                    out.append(cvt(TB[q][sp][2 * x], acc[q][0], acc[q][1]))
                    out.append(cvt(TB[q][sp][2 * x + 1], acc[q][2], acc[q][3]))
        return out

    def Emf():
        return [mf(E[t], EA[s], XF[t][s], s == 0) for s in range(3) for t in range(nt)]

    def Lq():
        p = Prog()
        z, m, sm = V('z', 1), V('zm', 1), V('zs', 1)
        p('v_cndmask_b32 %s, %s, %s, s[%d:%d]' % (z, vNINF, E[3][1], sL48, sL48 + 1))
        for t, sg in ((0, sG0), (1, sG1), (2, sG2)):
            p('v_cndmask_b32 %s, %s, %s, s[%d:%d]' % (z, z, E[t][1], sg, sg + 1))
        rowred(p, 'v_max_f32', m, z)
        xred(p, 'v_max_f32', m, tag + 'zm')
        p('v_sub_f32 %s, %s, %s' % (z, z, m))
        p('v_exp_f32 %s, %s' % (z, z))
        rowred(p, 'v_add_f32', sm, z)
        if PAIRZ:
            ZS.extend([z, sm])
            return p.l
        xred(p, 'v_add_f32', sm, tag + 'zs')
        p('v_rcp_f32 %s, %s' % (sm, sm))
        return p.l + Lq2(z, sm)

    def Lq2(z, sm):
        p = Prog()
        p('v_mul_f32 %s, %s, %s' % (z, z, sm))
        p('v_cvt_pk_bf16_f32 %s, %s, %s' % (z, z, z))
        p('ds_write_b16 %s, %s offset:%d' % (aPSw, z, PS - SCR))
        w = p.l[-1]
        p('ds_read2_b64 %s, %s offset0:72 offset1:76' % (PB[3][0], aPSr))
        p.l[-1].after = [w]
        p('ds_read2_b64 %s, %s offset0:80 offset1:84' % (PB[3][1], aPSr))
        p.l[-1].after = [w]
        return p.l

    def keyL():
        return [Ins('v_cndmask_b32 %s, %s, %s, s[%d:%d]' % (eL[q], vNINF, E[q][0], sG0, sG0 + 1)) for q in range(3)]

    def Smf(q):
        return [mf(S[q][k], XF[k][s], TB[q][s], s == 0) for s in range(3) for k in range(3)]

    def soft(q):
        p = Prog()
        v = [S[q][k][r] for k in range(3) for r in range(4)] + [str(eL[q])]
        if not fast:
            m = V('m%d' % q, 1)
            p('v_max3_f32 %s, %s, %s, %s' % (m, v[12], v[0], v[1]))
            for k in range(2, 12, 2):
                p('v_max3_f32 %s, %s, %s, %s' % (m, m, v[k], v[k + 1]))
            xred(p, 'v_max_f32', m, tag + 'm%d' % q)
            for k in range(13):
                p('v_sub_f32 %s, %s, %s' % (v[k], v[k], m))
        order = [12] + list(range(12))
        if MSUM:
            order = list(range(12))
        for k in order:
            p('v_exp_f32 %s, %s' % (v[k], v[k]))
        if MSUM:
            for k in range(6):
                p.l.append(cvt(PB[q][k >> 2][k & 3], v[2 * k], v[2 * k + 1]))
            p('v_mov_b32 %s, 0' % PB[q][1][3])
            p.l[-1].after = [p.l[-2]]
            state['p%d' % q] = p.l[-1]
            return p.l
        p('v_add_f32 %s, %s, %s' % (sums[q], v[12], v[0]))
        for k in range(1, 12):
            p('v_add_f32 %s, %s, %s' % (sums[q], sums[q], v[k]))
        rc = V('rc%d' % q, 1)
        if q == 0 and ZS:
            z, zs = ZS
            p('v_permlane32_swap_b32 %s, %s' % (sums[0], zs))
            p('v_add_f32 %s, %s, %s' % (sums[0], sums[0], zs))
            p('v_mov_b32 %s, %s' % (zs, sums[0]))
            p('v_permlane16_swap_b32 %s, %s' % (sums[0], zs))
            p('v_add_f32 %s, %s, %s' % (sums[0], sums[0], zs))
            p('v_rcp_f32 %s, %s' % (rc, sums[0]))
            p('v_mov_b32 %s, %s' % (zs, rc))
            p('v_permlane32_swap_b32 %s, %s' % (rc, zs))
            p.extend(Lq2(z, zs))
        else:
            xred(p, 'v_add_f32', sums[q], tag + 's%d' % q)
            p('v_rcp_f32 %s, %s' % (rc, sums[q]))
        for k in range(6):
            p('v_mul_f32 %s, %s, %s' % (v[2 * k], v[2 * k], rc))
            p('v_mul_f32 %s, %s, %s' % (v[2 * k + 1], v[2 * k + 1], rc))
            p.l.append(cvt(PB[q][k >> 2][k & 3], v[2 * k], v[2 * k + 1]))
        p('v_mul_f32 %s, %s, %s' % (v[12], v[12], rc))
        p.l.append(cvt(PB[q][1][2], v[12], '0'))
        p('v_mov_b32 %s, 0' % PB[q][1][3])
        p.l[-1].after = [p.l[-2]]
        return p.l

    def check():
        p = Prog()
        hi, lo = V('hi', 1), V('lo', 1)
        sv = RC if MSUM else sums
        p('v_max3_u32 %s, %s, %s, %s' % (hi, sv[0], sv[1], sv[2]))
        p('v_min3_u32 %s, %s, %s, %s' % (lo, sv[0], sv[1], sv[2]))
        p('v_cmp_lt_u32 vcc, 0x5f800000, %s' % hi)
        p('s_mov_b64 s[%d:%d], vcc' % (sBAD, sBAD + 1))
        p('v_cmp_gt_u32 vcc, 0x1f800000, %s' % lo)
        p('s_or_b64 s[%d:%d], s[%d:%d], vcc' % (sBAD, sBAD + 1, sBAD, sBAD + 1))
        return p.l

    ONES = V('ones')
    SUMA = [V('suma%d' % q) for q in range(3)]
    RC = [V('rcy%d' % q, 1) for q in range(3)]
    OB = [[V('ob%d_%d' % (q, r)) for r in range(4)] for q in range(3)]
    CH2 = ((0, 0), (1, 0), (0, 1), (1, 1)) if CHAIN else ((0, 0), (0, 1), (1, 0), (1, 1))

    def U(q):
        out = []
        if not MSUM:
            return out
        if not state['ones']:
            state['ones'] = True
            for k in range(4):
                out.append(Ins('v_mov_b32 %s, 0x3f803f80' % ONES[k]))
                out[-1].late = True
        out.append(Ins('v_exp_f32 %s, %s' % (eL[q], eL[q])))
        out.append(cvt(PB[q][1][2], eL[q], '0'))
        out[-1].after = [state['p%d' % q]]
        out += [mf(SUMA[q], ONES, PB[q][k], k == 0) for k in range(2)]
        out.append(Ins('v_rcp_f32 %s, %s' % (RC[q], SUMA[q][0])))
        out[-1].deadline = 4 * (nmf() + 2) + 24
        return out

    def Yp(q, s):
        out = []
        acc = [V('ya%d_%d_%d' % (q, s, x)) for x in range(2)]
        for k, x in CH2:
            out.append(mf(acc[x], XT[2 * s + x][k], PB[q][k], k == 0))
        for r in range(4):
            if MSUM:
                for x in range(2):
                    out.append(Ins('v_mul_f32 %s, %s, %s' % (acc[x][r], acc[x][r], RC[q])))
            out.append(cvt(YB[q][s][r], acc[0][r], acc[1][r]))
            if MSUM:
                out[-1].deadline = 4 * (nmf() + 4) + YLAG
        return out

    def Lp(s):
        if not withL:
            return []
        out = []
        acc = [V('yl%d_%d' % (s, x)) for x in range(2)]
        for k, x in CH2:
            out.append(mf(acc[x], PB[3][k], XT[2 * s + x][k], k == 0))
        y = V('ylc%d' % s, 1)
        out.append(cvt(y, acc[0][0], acc[1][0]))
        out.append(Ins('ds_write_b32 %s, %s offset:%d' % (aYLw, y, YL - SCR + 64 * s)))
        out[-1].deadline = 4 * (nmf() + 4) + 60
        state['ylw'].append(out[-1])
        if len(state['ylw']) == 3:
            out.append(Ins('ds_write_b32 %s, %s' % (aFw, aFw)))
            out[-1].after = state['ylw']
            out[-1].deadline = 4 * (nmf() + 4) + 80
        return out

    def Op(q, jj):
        out = []
        acc = [V('oa%d_%d_%d' % (q, jj, x)) for x in range(2)]
        for s, x in ([(s, x) for x in range(2) for s in range(3)] if CHAIN else
                     [(s, x) for s in range(3) for x in range(2)]):
            out.append(mf(acc[x], YB[q][s], W2s[q][(2 * jj + x) * 3 + s], s == 0))
        for r in range(4):
            out.append(cvt(OB[q][r][jj], acc[0][r], acc[1][r]))
        state['o%d' % q] = state.get('o%d' % q, 0) + 1
        if state['o%d' % q] == 3:
            for r in range(4):
                T0 = 16 * q + 4 * r
                row0 = T0 // 7
                thr = min(4, 7 * (row0 + 1) - T0)
                out.append(Ins('buffer_store_dwordx3 %s, %s, s[16:19], s%d offen offset:%d %s'
                               % (OB[q][r][0:3], vS[thr], sROW + row0, 192 * (T0 - 7 * row0), STFLAG)))
                out[-1].deadline = 4 * (nmf() + 6) + STD0 + STGAP * r
        return out

    L = (lambda f: f()) if withL else (lambda f: [])
    seq = late_addresses(V, withL) + reads()

    def nmf():
        return sum(1 for i in seq if i.kind == 'mfma') - (3 if withL and PRE and not LATEE else 0)

    def CK():
        if not fast:
            return []
        ck = check()
        ck[-1].deadline = 4 * nmf() + 40
        return ck
    macro = {'a': 'u0 y00 y01 y02', 'b': 'u1 y10 y11 y12', 'c': 'u2 y20 y21 y22 k', 'l': 'l0 l1 l2',
             '0': 'o00 o01 o02', '1': 'o10 o11 o12', '2': 'o20 o21 o22'}
    toks = []
    for tk in PLAN.split(','):
        toks += macro[tk].split() if tk in macro else [tk]
    for tk in toks:
        c = tk[0]
        if c == 'e':
            seq += Emf() + keyL() + L(Lq)
        elif c == 't':
            seq += T([int(x) for x in tk[1:]])
        elif c == 's':
            seq += Smf(int(tk[1])) + soft(int(tk[1]))
        elif c == 'u':
            seq += U(int(tk[1]))
        elif c == 'y':
            seq += Yp(int(tk[1]), int(tk[2]))
        elif c == 'l':
            seq += Lp(int(tk[1]))
        elif c == 'o':
            seq += Op(int(tk[1]), int(tk[2]))
        elif c == 'k':
            seq += CK()
    pre = []
    if withL and PRE:
        early = set(W1[:PRE]) if LATEE else set(EA) | set(XF[3]) | set(W1[:PRE]) | {E[3]}
        rest = []
        for i in seq:
            wb = {VReg.all[r] for k, r in i.wset if k == 'v' and r >= VBASE}
            (pre if wb and wb <= early else rest).append(i)
        seq = rest
    return pre, seq, W2


def ltail(W2):
    p = Prog()
    YL2 = [VReg('yl2_%d' % s, 4) for s in range(3)]
    f = VReg('fl', 2)
    aFr, aYLr, vOL, t1, t2 = [VReg(n, 1) for n in 'aFr aYLr vOL t1 t2'.split()]
    p('v_add_u32 %s, -8, %s' % (aFr, aFw))
    p('s_mul_i32 s41, s28, %d' % SSTR)
    p('s_add_u32 s41, s41, %d' % YL)
    p('v_and_b32 %s, 48, v0' % t1)
    p('v_bfe_u32 %s, v0, 2, 2' % t2)
    p('v_min_u32 %s, 2, %s' % (t2, t2))
    p('v_mul_u32_u24 %s, %d, %s' % (t2, 4 * SSTR, t2))
    p('v_add3_u32 %s, %s, %s, s41' % (aYLr, t1, t2))
    p('L_poll2:')
    p('ds_read_b64 %s, %s' % (f, aFr))
    for s in range(3):
        p('ds_read_b128 %s, %s offset:%d' % (YL2[s], aYLr, 64 * s))
    p('s_mov_b32 s42, %d' % ((GENJ - 192) // 16))
    p('v_mul_lo_u32 %s, %s, s42' % (vOL, t1))
    p('v_add_u32 %s, %s, %s' % (vOL, vOL, vS[4]))
    p('s_waitcnt lgkmcnt(0)')
    p('v_and_b32 %s, %s, %s' % (f[0], f[0], f[1]))
    p('v_readfirstlane_b32 s40, %s' % f[0])
    p('s_cmp_eq_u32 s40, 0')
    p('s_cbranch_scc1 L_poll2')
    acc = [VReg('ola%d' % j, 4) for j in range(6)]
    ob = VReg('olb', 4)
    for s in range(3):
        for j in range(6):
            p.l.append(mf(acc[j], YL2[s], W2[3 * j + s], s == 0))
    for jj in range(3):
        p.l.append(cvt(ob[jj], acc[2 * jj][0], acc[2 * jj + 1][0]))
    p('buffer_store_dwordx3 %s, %s, s[16:19], s%d offen %s' % (ob[0:3], vOL, sBASE0, STFLAG))
    return p.l


def build():
    pro = prologue()
    pre, seq, W2 = window(FAST, True, 'f')
    lt = ltail(W2)
    lblocks = set()
    for i in lt:
        lblocks |= blocks_of(i)
    live = {b for b in lblocks if b in PIN or b in W2 or b in (aFw, vS[4])}
    live0 = set(PIN)
    for i in pre:
        live0 |= blocks_of(i)
    import random
    best = None
    for seed in range(SEED0, SEED0 + TRIES):
        rnd = random.Random(seed)
        cand, t = sched.schedule(seq, slack=SLACK, limit=LIMIT, live0=live0, liveout=live, rnd=rnd,
                                 noise=NOISE if seed else 0)
        try:
            allocate(pre + cand, LO, HI, pre=dict(PIN), liveout=live)
        except RuntimeError:
            continue
        if best is None or t < best[1]:
            best = (cand, t, seed)
    assert best, 'no schedule fits'
    main, t = best[0], best[1]
    print('main schedule %d slots, seed %d' % (t, best[2]), file=sys.stderr)
    pa, pv = VReg('pa', 1), VReg('pv', 1)
    q = Prog()
    q('v_mov_b32 %s, %d' % (pa, FLG))
    q('L_poll1:')
    q('ds_read_b32 %s, %s' % (pv, pa))
    q('s_waitcnt lgkmcnt(0)')
    q('v_readfirstlane_b32 s40, %s' % pv)
    q('s_cmp_lt_u32 s40, %d' % (4 if USEGATE else 8))
    q('s_cbranch_scc1 L_poll1')
    q.l[-1].rset.add(('v', pa.base))
    if LATEE:
        q = Prog()
    q('s_setprio 0')
    pre1 = [i for i in pre if i.kind == 'ds_read' and str(aE) + ' ' not in i.text]
    pre2 = [i for i in pre if i not in pre1]
    if PH:
        k = [n for n, i in enumerate(main) if getattr(i, 'phase', False)][0]
        j = max(n for n in range(k) if main[n].kind == 'mfma')
        main.insert(k, Ins('s_setprio %s' % PH[2]))
        main.insert(j + 1, Ins('s_setprio %s' % PH[1]))
        q.l[-1] = Ins('s_setprio %s' % PH[0])
    if PR2:
        nm = 0
        for k, i in enumerate(main):
            nm += i.kind == 'mfma'
            if nm == PR2:
                main.insert(k + 1, Ins('s_setprio 0'))
                break
        q('s_cmp_lt_u32 s3, 8')
        q('s_cbranch_scc1 L_pr')
        q('s_setprio 1')
        q('L_pr:')
    npre = len(pre1)
    main = pre1 + [Ins('L_go2:')] + q.l + stamp() + pre2 + [Ins('L_page:')] + ([Ins('L_h1:'), Ins('s_cbranch_execz L_hopret')] if WARM else []) + [Ins('s_waitcnt vmcnt(0) lgkmcnt(0)')] + ([Ins('s_barrier')] if SYNC else []) + stamp() + main
    asg, peak = allocate(main, LO, HI, pre=dict(PIN), liveout=live)
    asgl, pl = allocate(lt, LO, HI, pre={b: asg[b] for b in live}, liveout=lblocks)
    print('peak regs', peak + 1, file=sys.stderr)
    mainr = rewrite(main, asg)
    if NOST:
        mainr = [i for i in mainr if i.kind != 'vstore']
    for fv, off, name, sr in GATE:
        k = [i for i, x in enumerate(mainr) if x.text.startswith('s_cbranch_scc1 L_wait' + name)][0]
        mainr.insert(k + 1, Ins('L_back%s:' % name))
    assert all(r < 80 for i in mainr[:npre] for k_, r in i.wset)
    k = [i for i, x in enumerate(pro) if x.text == 'L_pre0:'][0]
    pro[k + 1:k + 1] = [Ins(x.text) for x in mainr[:npre]]
    body = pro + [reset_lgkm()] + mainr
    body += stamp()
    p = Prog()
    p('L_mainend:')
    p('s_cmp_ge_u32 s3, 8')
    p('s_cbranch_scc1 L_tail')
    p('L_noL:')
    dbg = STAMP or AMP >= 0
    if FAST:
        if FORCESLOW:
            p('s_branch L_slow')
        else:
            p('s_cmp_lg_u64 s[%d:%d], 0' % (sBAD, sBAD + 1))
            p('s_cbranch_scc1 L_slow')
    p('L_done:')
    p('s_branch L_dbg' if dbg else 's_endpgm')
    p('L_pad2:')
    p('L_h3:')
    if WARM:
        p('s_branch L_hopret')
    p('L_tail:')
    p('s_nop 4')
    body += p.l + rewrite(lt, asgl) + [Ins('s_branch L_noL')]
    for fv, off, name, sr in GATE:
        p = Prog()
        p('L_wait%s:' % name)
        p('v_mov_b32 v%d, %d' % (asg[fv], FLG))
        p('ds_read_b32 v%d, v%d offset:%d' % (asg[fv], asg[fv], off))
        p('s_waitcnt lgkmcnt(0)')
        p('v_readfirstlane_b32 s%d, v%d' % (sr, asg[fv]))
        p('s_cmp_lt_u32 s%d, 4' % sr)
        p('s_cbranch_scc1 L_wait%s' % name)
        p('s_branch L_back%s' % name)
        body += p.l
    body.append(Ins('L_fin:'))
    if dbg:
        body += [Ins('L_dbg:')] + stamp() + stamp_dump() + [Ins('s_endpgm')]
    if FAST:
        p = Prog()
        p('L_slow:')
        p('s_waitcnt vmcnt(0) lgkmcnt(0)')
        p('s_nop 7')
        call(p, 'L_sub_addr')
        global ORDER, MSUM, WSLACK, XSLACK, PLAN
        ORDER, MSUM, WSLACK, XSLACK = 'c', 0, 16, 16
        PLAN = 't012,e,s0,s1,s2,a,b,c,0,1,2'
        sched.OVER, sched.EAGER, sched.LDS_LAT = 0, 24, 28
        _, seq2, _ = window(False, False, 'g')
        slow, _ = sched.schedule(seq2, slack=16)
        asg2, _ = allocate(slow, LO, HI, pre=dict(PIN))
        body += p.l + rewrite(slow, asg2) + [Ins('s_branch L_done')]
    body = finalize(body)
    hdr = open(os.path.join(os.path.dirname(os.path.abspath(__file__)), 'header.txt')).read()
    s = hdr
    s += '; @launch grid=(%d,1,1) block=(768,1,1) lds=%d\n' % (NWG + NH, LDS)
    s += '.amdgcn_target "amdgcn-amd-amdhsa--gfx950"\n.text\n.p2align 12\nL_anchor:\n.globl %s_kernel\n.p2align 8\n' % NAME
    s += '.type %s_kernel,@function\n%s_kernel:\n' % (NAME, NAME)
    txt = render(body)
    if ALIGN:
        txt = txt.replace('L_pad:\n', 'L_pad:\n.fill ((8192-((L_pad-L_anchor)+(L_page-L_h2))%4096)%4096)/4, 4, 0xbf810000\n')
    txt = txt.replace('L_pad2:\n', 'L_pad2:\n.fill ((4096-(L_pad2-L_page))/4)*(((L_pad2-L_page)/4096)^1), 4, 0xbf810000\n')
    s += txt
    s += 'L_end:\n    s_endpgm\n'
    s += '''.section .rodata,"a"
.p2align 6
.amdhsa_kernel %s_kernel
  .amdhsa_next_free_vgpr 168
  .amdhsa_next_free_sgpr 102
  .amdhsa_accum_offset 168
  .amdhsa_group_segment_fixed_size 0
  .amdhsa_kernarg_size 48
  .amdhsa_user_sgpr_count 2
  .amdhsa_user_sgpr_kernarg_segment_ptr 1
  .amdhsa_system_sgpr_workgroup_id_x 1
.end_amdhsa_kernel
''' % NAME
    print('main', stats(finalize(rewrite(main, asg))), 'nstamps', nstamp[0], file=sys.stderr)
    return s


def fix_hop(src):
    import subprocess, re
    if not WARM:
        return src
    lines = src.split('\n')
    a, b = lines.index('L_page:'), lines.index('L_h3:')
    probe = list(lines)
    for k in range(a + 1, b):
        if probe[k].startswith('    '):
            probe[k] = 'L_probe%d:\n' % k + probe[k]
    open('_probe.s', 'w').write('\n'.join(probe))
    subprocess.check_call(['clang', '-x', 'assembler', '-target', 'amdgcn-amd-amdhsa',
                           '-mcpu=gfx950', '-c', '_probe.s', '-o', '_probe.o'])
    sym = subprocess.check_output(['llvm-objdump', '-t', '_probe.o']).decode()
    addr = {m.group(2): int(m.group(1), 16) for m in re.finditer(r'^([0-9a-f]+) .* (L_\w+)$', sym, re.M)}
    base = addr['L_page']
    print('main bytes', addr['L_mainend'] - base, file=sys.stderr)
    if addr['L_h3'] - base < 4096 + 128:
        return src
    k = min(k for k in range(a + 1, b) if addr.get('L_probe%d' % k, 0) - base >= 4096
            and 'mfma' in lines[k - 1])
    assert addr['L_probe%d' % k] - base < 4096 + 120
    lines[b] = 'L_h3x:'
    lines[k:k] = ['L_h3:', '    s_cbranch_execz L_hopret']
    return '\n'.join(lines)


if __name__ == '__main__':
    open(sys.argv[1], 'w').write(fix_hop(build()))
```
